```python
import torch

def _softmax(x, axis=-1):
    return torch.softmax(x, dim=axis)
def _gelu(x):
    return torch.nn.functional.gelu(x, approximate="tanh")
def _silu(x):
    return torch.nn.functional.silu(x)
def _sigmoid(x):
    return torch.sigmoid(x)
def _layernorm(x, axis=-1, eps=1e-5):
    m = x.mean(dim=axis, keepdim=True)
    v = x.var(dim=axis, keepdim=True, unbiased=False)
    return (x - m) / torch.sqrt(v + eps)
def _scatter_add(tgt, idx, src, axis=0):
    return tgt.clone().index_add_(axis, idx, src)
def _segment_sum(src, seg, n):
    out = torch.zeros((n,) + src.shape[1:], dtype=src.dtype)
    return out.index_add_(0, seg, src)
def _pad(x, pw):
    flat = tuple(v for pair in reversed(pw) for v in pair)
    return torch.nn.functional.pad(x, flat)

kernel_name = 'parallel_sum__linear_kernel_hedgehog__dense_activation_silu__prompt'

def setup_inputs():

    _w = (lambda a: (lambda t: t.to(torch.bfloat16) if t.is_floating_point() else t)(torch.as_tensor(a)))
    def _A_setup():
        B, S, D, H = 1, 2048, 576, 32
        Dh = D // H
        return {
            "x": _w((lambda *s: torch.randn(*s, dtype=torch.bfloat16) * 0.05)(B, S, D)),
            "wqkv": _w((lambda *s: torch.randn(*s, dtype=torch.bfloat16) * 0.2)(D, 3 * D)),
            "w_phi": _w((lambda *s: torch.randn(*s, dtype=torch.bfloat16) * 0.2)(H, Dh, Dh) * (Dh ** -0.5)),
            "wo": _w((lambda *s: torch.randn(*s, dtype=torch.bfloat16) * 0.05)(D, D)),
        }
    _A_in = _A_setup()

    def _B_setup():
        B, S, D, F = 1, 2048, 576, 4608
        return {
            "x": _w((lambda *s: torch.randn(*s, dtype=torch.bfloat16) * 0.05)(B, S, D)),
            "w1": _w((lambda *s: torch.randn(*s, dtype=torch.bfloat16) * 1.6)(D, F) * (D ** -0.5)),
            "w2": _w((lambda *s: torch.randn(*s, dtype=torch.bfloat16) * 0.1)(F, D) * (F ** -0.5)),
        }
    _B_in = _B_setup()

    return {
        "A_x": _A_in["x"],
        "A_wqkv": _A_in["wqkv"],
        "A_w_phi": _A_in["w_phi"],
        "A_wo": _A_in["wo"],
        "B_x": _B_in["x"],
        "B_w1": _B_in["w1"],
        "B_w2": _B_in["w2"],
    }

def reference(A_x, A_wqkv, A_w_phi, A_wo, B_x, B_w1, B_w2):
    def _A_ref(x, wqkv, w_phi, wo):
        B, S, D = x.shape
        H = 32; Dh = D // H
        qkv = (lambda x, *d: x.permute(*d))((x @ wqkv).reshape(B, S, 3, H, Dh), 2, 0, 3, 1, 4)
        q, k, v = qkv[0], qkv[1], qkv[2]
        pq = torch.einsum("bhsd,hdf->bhsf", q, w_phi)
        pk = torch.einsum("bhsd,hdf->bhsf", k, w_phi)
        phi_q = torch.concatenate([_softmax(pq, axis=-1), _softmax(-pq, axis=-1)], axis=-1)
        phi_k = torch.concatenate([_softmax(pk, axis=-1), _softmax(-pk, axis=-1)], axis=-1)
        kv = torch.einsum("bhsf,bhsd->bhfd", phi_k, v)
        z  = torch.einsum("bhsf->bhf", phi_k)
        num = torch.einsum("bhqf,bhfd->bhqd", phi_q, kv)
        den = torch.einsum("bhqf,bhf->bhq", phi_q, z)[..., None] + 1e-6
        o = num / den
        return (lambda x, *d: x.permute(*d))(o, 0, 2, 1, 3).reshape(B, S, D) @ wo

    def _B_ref(x, w1, w2):
        h = torch.einsum("bsd,df->bsf", x, w1)
        h = _silu(h)
        out = torch.einsum("bsf,fd->bsd", h, w2)
        return out

    x = A_x
    xn = _layernorm(x, axis=-1)
    return x + _A_ref(xn, A_wqkv, A_w_phi, A_wo) + _B_ref(xn, B_w1, B_w2)
```

```python
import sys

NAME = "parallel_sum__linear_kernel_hedgehog__dense_activation_silu__prompt"

S, D, H, DH, F = 2048, 576, 32, 18, 4608
KT = D + F
LD_HC = KT * 2
XN_OFF = 0
HC_OFF = 0x400000
QKV_OFF = 0x1C00000
KVP_OFF = 0x2400000
PART_OFF = 0x3000000
WS_SIZE = 268435456


class A:
    def __init__(s):
        s.L = []

    def __call__(s, x):
        s.L.append('    ' + x)

    def lab(s, x):
        s.L.append(x + ':')

    def c(s, x):
        s.L.append('    ; ' + x)

    def ext(s, lines):
        s.L.extend(lines)


def sel(a, dst, v1, v2):
    a(f"s_mov_b32 s{dst}, {v1}")
    a(f"s_mov_b32 s33, {v2}")
    a(f"s_cselect_b32 s{dst}, s{dst}, s33")


def srd(a, base, lo, hi, nbytes):
    a(f"s_mov_b32 s{base}, {lo}")
    a(f"s_mov_b32 s{base+1}, {hi}")
    a(f"s_mov_b32 s{base+2}, {nbytes}")
    a(f"s_mov_b32 s{base+3}, 0x00020000")


def srd_add(a, base, off):
    a(f"s_add_u32 s{base}, s{base}, {off}")
    a(f"s_addc_u32 s{base+1}, s{base+1}, 0")


STAMPS = len(sys.argv) > 2 and sys.argv[2] == "stamp"


def stamp(a, idx):
    if not STAMPS:
        return
    a("s_memtime s[60:61]")
    a("s_waitcnt lgkmcnt(0)")
    a(f"s_mov_b32 s{62+idx}, s60")
    a("s_memrealtime s[60:61]")
    a("s_waitcnt lgkmcnt(0)")
    a(f"s_mov_b32 s{66+idx}, s60")


def stamp_flush(a, n, wg):
    if not STAMPS:
        return
    a("s_load_dwordx2 s[60:61], s[0:1], 72")
    a("s_waitcnt lgkmcnt(0)")
    srd(a, 72, "s60", "s61", WS_SIZE)
    a("v_cmp_eq_u32 vcc, 0, v0")
    a("s_and_saveexec_b64 s[76:77], vcc")
    a("s_lshl_b32 s60, s2, 5")
    a("s_add_u32 s60, s60, 0xF000000")
    a("v_mov_b32 v10, s60")
    for i in range(8):
        a(f"v_mov_b32 v11, s{62+i}")
        a(f"buffer_store_dword v11, v10, s[72:75], 0 offen offset:{4*i}")
    a("s_mov_b64 exec, s[76:77]")
    a.lab("L_nostamp")


def kernel_head(a, name):
    a.L.append(f".globl {name}")
    a.L.append(".p2align 8")
    a.L.append(f".type {name},@function")
    a.L.append(f"{name}:")


def kernel_desc(name, vgpr, agpr, sgpr=96):
    acc = (vgpr + 3) // 4 * 4
    nfv = acc + agpr
    return f""".amdhsa_kernel {name}
  .amdhsa_next_free_vgpr {nfv}
  .amdhsa_next_free_sgpr {sgpr}
  .amdhsa_accum_offset {acc}
  .amdhsa_group_segment_fixed_size 0
  .amdhsa_kernarg_size 80
  .amdhsa_user_sgpr_count 2
  .amdhsa_user_sgpr_kernarg_segment_ptr 1
  .amdhsa_system_sgpr_workgroup_id_x 1
.end_amdhsa_kernel
"""


def dpp_reduce_sum(a, v):
    for sh in (1, 2, 4, 8):
        a("s_nop 1")
        a(f"v_add_f32_dpp v{v}, v{v}, v{v} row_shr:{sh} row_mask:0xf bank_mask:0xf bound_ctrl:0")
    a("s_nop 1")
    a(f"v_add_f32_dpp v{v}, v{v}, v{v} row_bcast:15 row_mask:0xa bank_mask:0xf")
    a("s_nop 1")
    a(f"v_add_f32_dpp v{v}, v{v}, v{v} row_bcast:31 row_mask:0xc bank_mask:0xf")
    a("s_nop 1")


def gen_ln(a):
    name = "ln_kernel"
    kernel_head(a, name)
    a("s_load_dwordx2 s[4:5], s[0:1], 0")
    a("s_load_dwordx2 s[6:7], s[0:1], 72")
    a("s_cmp_ge_u32 s2, 512")
    a("s_cbranch_scc1 L_ln_end")
    a("v_lshrrev_b32 v2, 6, v0")
    a("v_and_b32 v1, 63, v0")
    a("s_lshl_b32 s3, s2, 2")
    a("v_add_u32 v2, s3, v2")
    a("s_movk_i32 s3, 1152")
    a("v_mul_lo_u32 v2, v2, s3")
    a("s_waitcnt lgkmcnt(0)")
    srd(a, 8, "s4", "s5", S * D * 2)
    srd(a, 12, "s6", "s7", S * D * 2)
    a("v_lshl_add_u32 v3, v1, 4, v2")
    a("v_lshlrev_b32 v4, 2, v1")
    a("v_add_u32 v4, 1024, v4")
    a("v_add_u32 v4, v4, v2")
    a("v_mov_b32 v12, 0")
    a("v_cmp_gt_u32 vcc, 32, v1")
    a("buffer_load_dwordx4 v[8:11], v3, s[8:11], 0 offen")
    a("s_and_saveexec_b64 s[16:17], vcc")
    a("buffer_load_dword v12, v4, s[8:11], 0 offen")
    a("s_mov_b64 exec, s[16:17]")
    a("s_waitcnt vmcnt(0)")
    for i in range(5):
        src = 8 + i
        a(f"v_lshlrev_b32 v{16+2*i}, 16, v{src}")
        a(f"v_and_b32 v{17+2*i}, 0xffff0000, v{src}")
    a("v_add_f32 v26, v16, v17")
    for i in range(2, 10):
        a(f"v_add_f32 v26, v26, v{16+i}")
    dpp_reduce_sum(a, 26)
    a("v_readlane_b32 s18, v26, 63")
    a("s_nop 3")
    a("v_mov_b32 v27, s18")
    a("v_mul_f32 v27, 0x3ae38e39, v27")
    a("v_mov_b32 v26, 0")
    for i in range(8):
        a(f"v_sub_f32 v28, v{16+i}, v27")
        a("v_fmac_f32 v26, v28, v28")
    a("v_sub_f32 v28, v24, v27")
    a("v_mul_f32 v29, v28, v28")
    a("v_sub_f32 v28, v25, v27")
    a("v_fmac_f32 v29, v28, v28")
    a("v_cndmask_b32 v29, 0, v29, vcc")
    a("v_add_f32 v26, v26, v29")
    dpp_reduce_sum(a, 26)
    a("v_readlane_b32 s19, v26, 63")
    a("s_nop 3")
    a("v_mov_b32 v28, s19")
    a("v_mul_f32 v28, 0x3ae38e39, v28")
    a("v_cvt_pk_bf16_f32 v27, v27, v28")
    a("v_and_b32 v28, 0xffff0000, v27")
    a("v_lshlrev_b32 v27, 16, v27")
    a("v_add_f32 v28, 0x3727c5ac, v28")
    a("v_cvt_pk_bf16_f32 v28, v28, v28")
    a("v_lshlrev_b32 v28, 16, v28")
    a("v_sqrt_f32 v28, v28")
    a("s_nop 0")
    a("v_cvt_pk_bf16_f32 v28, v28, v28")
    a("v_lshlrev_b32 v28, 16, v28")
    a("v_rcp_f32 v29, v28")
    a("s_nop 0")
    for i in range(5):
        e0, e1 = 16 + 2 * i, 17 + 2 * i
        a(f"v_sub_f32 v{e0}, v{e0}, v27")
        a(f"v_sub_f32 v{e1}, v{e1}, v27")
        a(f"v_cvt_pk_bf16_f32 v30, v{e0}, v{e1}")
        a(f"v_lshlrev_b32 v{e0}, 16, v30")
        a(f"v_and_b32 v{e1}, 0xffff0000, v30")
        for e in (e0, e1):
            a(f"v_mul_f32 v30, v{e}, v29")
            a(f"v_fma_f32 v31, -v30, v28, v{e}")
            a(f"v_fma_f32 v{e}, v31, v29, v30")
        a(f"v_cvt_pk_bf16_f32 v{8+i}, v{e0}, v{e1}")
    a("buffer_store_dwordx4 v[8:11], v3, s[12:15], 0 offen")
    a("s_and_saveexec_b64 s[16:17], vcc")
    a("buffer_store_dword v12, v4, s[12:15], 0 offen")
    a("s_mov_b64 exec, s[16:17]")
    a.lab("L_ln_end")
    a("s_endpgm")
    return kernel_desc(name, 32, 0, 32)


S_SRDA, S_SRDB, S_SRDC = 4, 8, 12
S_ABASE, S_BK, S_LDB32, S_T = 16, 17, 18, 19
S_OFFB = 20
S_M0B = 24
S_W1024 = 28
S_APIECE = 29
V_DA, V_DB, V_A0, V_A1, V_B0 = 2, 3, 4, 5, 6
V_FR = 16

ASLOT = 16384


class Core:
    def __init__(s, NP, nsteps, NA, NB, bslot_np=None, pre_step=None):
        s.NP, s.nsteps, s.NA, s.NB = NP, nsteps, NA, NB
        s.bslot = (bslot_np or NP) * 4096
        s.b_base = NA * ASLOT
        s.nblk = (nsteps + 1) // 2
        s.out = []
        s.pre_step = pre_step
        s.njb = (4 * NP + 7) // 8
        s.frag_x = V_FR
        s.frag_y = V_FR + 16 + 4 * NP
        s.vgpr_end = s.frag_y + 16 + 4 * NP

    def bslot_base(s, u):
        return s.b_base + (u % s.NB) * s.bslot

    def dma_B(s, u):
        groups = []
        for j in range(s.njb):
            g = [f"s_add_u32 m0, s{S_M0B+j}, {s.bslot_base(u)}",
                 f"s_add_u32 s{S_T}, s{S_BK}, s{S_OFFB+j}",
                 f"buffer_load_dwordx4 v{V_DB}, s[{S_SRDB}:{S_SRDB+3}], s{S_T} offen lds"]
            groups.append(g)
            s.out.append(u - 2)
        return groups

    def dma_A(s, blk):
        groups = []
        for j in range(2):
            g = [f"s_add_u32 m0, s{S_W1024}, {(blk % s.NA) * ASLOT + j * 8192}",
                 f"s_add_u32 s{S_T}, s{S_ABASE}, {blk * 128}"]
            if j:
                g.append(f"s_add_u32 s{S_T}, s{S_T}, s{S_APIECE}")
            g.append(f"buffer_load_dwordx4 v{V_DA}, s[{S_SRDA}:{S_SRDA+3}], s{S_T} offen lds")
            groups.append(g)
            s.out.append(2 * blk - 2)
        return groups

    def frag_reads(s, u, fr):
        ins = []
        va = V_A0 + (u & 1)
        aoff = ((u // 2) % s.NA) * ASLOT
        for mt in range(4):
            ins.append([f"ds_read_b128 v[{fr+4*mt}:{fr+4*mt+3}], v{va} offset:{aoff + mt*2048}"])
        vb = V_B0 + (u % s.NB)
        for p in range(s.NP):
            r = fr + 16 + 4 * p
            ins.append([f"ds_read_b64_tr_b16 v[{r}:{r+1}], v{vb} offset:{p*4096}"])
            ins.append([f"ds_read_b64_tr_b16 v[{r+2}:{r+3}], v{vb} offset:{p*4096+512}"])
        return ins

    def wait_for(s, deadline):
        last = -1
        for i, d in enumerate(s.out):
            if d <= deadline:
                last = i
        n = len(s.out) - 1 - last
        s.out = s.out[last + 1:]
        return n

    def emit(s, a):
        NP = s.NP
        for u in range(min(s.NB, s.nsteps)):
            if s.pre_step:
                s.pre_step(a, u)
            for g in s.dma_B(u):
                for x in g:
                    a(x)
            a(f"s_add_u32 s{S_BK}, s{S_BK}, s{S_LDB32}")
            if u < s.NA and u < s.nblk:
                for g in s.dma_A(u):
                    for x in g:
                        a(x)
        n = s.wait_for(-1)
        a(f"s_waitcnt vmcnt({n})")
        a("s_barrier")
        for g in s.frag_reads(0, s.frag_x):
            for x in g:
                a(x)
        a("s_waitcnt lgkmcnt(0)")
        a("s_barrier")
        stamp(a, 1)
        for u in range(s.nsteps):
            cur = s.frag_x if u % 2 == 0 else s.frag_y
            nxt = s.frag_y if u % 2 == 0 else s.frag_x
            fill = []
            if u + 1 < s.nsteps:
                fill += s.frag_reads(u + 1, nxt)
            if u + s.NB < s.nsteps:
                if s.pre_step:
                    tmp = A()
                    s.pre_step(tmp, u + s.NB)
                    fill.append([x.strip() for x in tmp.L])
                gs = s.dma_B(u + s.NB)
                gs[-1] = gs[-1] + [f"s_add_u32 s{S_BK}, s{S_BK}, s{S_LDB32}"]
                fill += gs
            if u % 2 == 1:
                blk = (u - 1) // 2 + s.NA
                if blk < s.nblk:
                    fill += s.dma_A(blk)
            mf = []
            for p in range(NP):
                for mt in range(4):
                    acc = (p * 4 + mt) * 4
                    mf.append(f"v_mfma_f32_16x16x32_bf16 a[{acc}:{acc+3}], v[{cur+16+4*p}:{cur+16+4*p+3}], v[{cur+4*mt}:{cur+4*mt+3}], a[{acc}:{acc+3}]")
            nm, nf = len(mf), len(fill)
            fi = 0
            for i, m in enumerate(mf):
                a(m)
                tgt = (i + 1) * nf // nm if i + 1 < nm else nf
                tgt = min(nf, max(tgt, 0))
                while fi < tgt:
                    for x in fill[fi]:
                        a(x)
                    fi += 1
            if u + 1 < s.nsteps:
                n = s.wait_for(u)
                a(f"s_waitcnt vmcnt({n}) lgkmcnt(0)")
                a("s_barrier")


def gemm_lane_setup(a, NB, bslot, b_base, ldb2_sgpr, lda2):
    a("v_and_b32 v1, 63, v0")
    a("v_lshrrev_b32 v10, 6, v0")
    a("s_nop 0")
    a("v_readfirstlane_b32 s30, v10")
    a("v_lshrrev_b32 v10, 3, v1")
    a("v_and_b32 v11, 7, v1")
    a("v_xor_b32 v11, v11, v10")
    a("v_lshlrev_b32 v11, 4, v11")
    a(f"s_mov_b32 s31, {lda2}")
    a(f"v_mul_lo_u32 v{V_DA}, v10, s31")
    a(f"v_add_u32 v{V_DA}, v{V_DA}, v11")
    a("v_lshrrev_b32 v11, 4, v1")
    a("v_and_b32 v11, 1, v11")
    a("s_and_b32 s31, s30, 1")
    a("s_lshl_b32 s31, s31, 1")
    a("v_or_b32 v11, s31, v11")
    a("v_bfe_u32 v12, v1, 1, 2")
    a("v_xor_b32 v12, v12, v11")
    a("v_lshlrev_b32 v12, 5, v12")
    a("v_and_b32 v13, 1, v1")
    a("v_lshl_add_u32 v12, v13, 4, v12")
    a(f"v_mul_lo_u32 v{V_DB}, v10, s{ldb2_sgpr}")
    a(f"v_add_u32 v{V_DB}, v{V_DB}, v12")
    a("v_and_b32 v10, 15, v1")
    a("v_lshrrev_b32 v11, 4, v1")
    a("v_and_b32 v12, 7, v10")
    a("v_xor_b32 v12, v12, v11")
    a("s_lshr_b32 s31, s30, 2")
    a("s_lshl_b32 s31, s31, 13")
    a("v_lshlrev_b32 v13, 7, v10")
    a("v_add_u32 v13, s31, v13")
    a(f"v_lshl_add_u32 v{V_A0}, v12, 4, v13")
    a("v_xor_b32 v12, 4, v12")
    a(f"v_lshl_add_u32 v{V_A1}, v12, 4, v13")
    a("v_bfe_u32 v10, v1, 2, 2")
    a("v_lshrrev_b32 v12, 1, v10")
    a("v_and_b32 v13, 1, v11")
    a("v_lshl_or_b32 v12, v13, 1, v12")
    a("s_and_b32 s31, s30, 3")
    a("v_xor_b32 v12, s31, v12")
    a("v_lshlrev_b32 v12, 5, v12")
    a("v_lshl_add_u32 v13, v11, 3, v10")
    a("v_lshl_add_u32 v12, v13, 7, v12")
    a("v_and_b32 v13, 3, v1")
    a("v_lshl_add_u32 v12, v13, 3, v12")
    for sl in range(NB):
        a(f"v_add_u32 v{V_B0+sl}, {b_base + sl*bslot}, v12")


def gemm_wave_setup(a, NP, ldb2_sgpr):
    njb = (4 * NP + 7) // 8
    a(f"s_lshl_b32 s{S_W1024}, s30, 10")
    a("s_and_b32 s31, s30, 3")
    a(f"s_mul_i32 s32, s31, s{ldb2_sgpr}")
    a("s_lshl_b32 s32, s32, 3")
    for j in range(njb):
        a(f"s_add_u32 s33, s30, {8*j}")
        a("s_lshr_b32 s33, s33, 2")
        a(f"s_min_u32 s33, s33, {NP-1}")
        a(f"s_lshl_b32 s{S_OFFB+j}, s33, 7")
        a(f"s_add_u32 s{S_OFFB+j}, s{S_OFFB+j}, s32")
        a(f"s_lshl_b32 s{S_M0B+j}, s33, 12")
        a("s_lshl_b32 s33, s31, 10")
        a(f"s_add_u32 s{S_M0B+j}, s{S_M0B+j}, s33")


def gen_gemm1(a):
    name = "gemm1_kernel"
    kernel_head(a, name)
    a("s_load_dwordx2 s[34:35], s[0:1], 8")
    a("s_load_dwordx2 s[36:37], s[0:1], 40")
    a("s_load_dwordx2 s[38:39], s[0:1], 72")
    a("s_cmp_ge_u32 s2, 256")
    a("s_cbranch_scc1 L_g1_end")
    stamp(a, 0)
    a("s_and_b32 s40, s2, 7")
    a("s_lshr_b32 s41, s2, 3")
    a("s_and_b32 s42, s41, 1")
    a("s_lshl_b32 s40, s40, 1")
    a("s_add_u32 s40, s40, s42")
    a("s_lshr_b32 s41, s41, 1")
    a("s_waitcnt lgkmcnt(0)")
    srd(a, S_SRDA, "s38", "s39", S * D * 2)
    a("s_mul_i32 s47, s40, 7")
    a("s_sub_u32 s48, s40, 4")
    a("s_mul_i32 s48, s48, 6")
    a("s_cmp_lt_u32 s40, 4")
    a("s_cselect_b32 s47, s47, s48")
    a(f"s_cselect_b32 s{S_SRDB}, s34, s36")
    a(f"s_cselect_b32 s{S_SRDB+1}, s35, s37")
    sel(a, S_SRDB + 2, D * 3 * D * 2, D * F * 2)
    a(f"s_mov_b32 s{S_SRDB+3}, 0x00020000")
    sel(a, 46, 3 * D * 2, F * 2)
    sel(a, 48, QKV_OFF, HC_OFF + D * 2)
    sel(a, S_SRDC + 2, S * 3 * D * 2, S * LD_HC - D * 2)
    sel(a, 50, 3 * D * 2, LD_HC)
    sel(a, 51, 0, 1)
    a(f"s_mov_b32 s{S_SRDC+3}, 0x00020000")
    a(f"s_add_u32 s{S_SRDC}, s38, s48")
    a(f"s_addc_u32 s{S_SRDC+1}, s39, 0")
    NB, NA = 4, 2
    gemm_lane_setup(a, NB, 7 * 4096, NA * ASLOT, 46, D * 2)
    gemm_wave_setup(a, 7, 46)
    a("s_lshl_b32 s31, s41, 7")
    a("s_lshl_b32 s32, s30, 3")
    a("s_add_u32 s31, s31, s32")
    a(f"s_mul_i32 s{S_ABASE}, s31, {D*2}")
    a(f"s_mov_b32 s{S_APIECE}, {64*D*2}")
    a(f"s_lshl_b32 s{S_BK}, s47, 7")
    a(f"s_lshl_b32 s{S_LDB32}, s46, 5")
    for i in range(112):
        a(f"v_accvgpr_write_b32 a{i}, 0")
    a("s_cmp_lt_u32 s40, 3")
    a("s_cbranch_scc0 L_g1_np6")
    cores = {}
    for NP in (7, 6):
        if NP == 6:
            a("s_branch L_g1_epi")
            a.lab("L_g1_np6")
        c = Core(NP, 18, NA, NB, bslot_np=7)
        cores[NP] = c
        c.emit(a)
        a(f"s_mov_b32 s52, {NP}")
    a.lab("L_g1_epi")
    stamp(a, 2)
    a("v_and_b32 v10, 15, v1")
    a("s_lshr_b32 s31, s30, 2")
    a("s_lshl_b32 s31, s31, 6")
    a("v_add_u32 v10, s31, v10")
    a("v_mul_lo_u32 v10, v10, s50")
    a("v_lshrrev_b32 v11, 4, v1")
    a("v_lshl_add_u32 v10, v11, 3, v10")
    a("s_and_b32 s31, s30, 3")
    a("s_lshl_b32 s31, s31, 5")
    a("v_add_u32 v10, s31, v10")
    a("s_lshl_b32 s31, s41, 7")
    a("s_mul_i32 s31, s31, s50")
    a("s_lshl_b32 s32, s47, 7")
    a("s_add_u32 s53, s31, s32")
    a("s_lshl_b32 s54, s50, 4")
    a("s_nop 7")
    a("s_nop 7")
    a("s_cmp_eq_u32 s51, 0")
    a("s_cbranch_scc0 L_g1_silu")
    for silu in (0, 1):
        if silu:
            a.lab("L_g1_silu")
        for mt in range(4):
            if mt == 0:
                a("s_mov_b32 s55, s53")
            else:
                a("s_add_u32 s55, s55, s54")
            for p in range(7):
                if p == 6:
                    a(f"s_cmp_lt_u32 s52, 7")
                    a(f"s_cbranch_scc1 L_g1_skip{silu}_{mt}")
                acc = (p * 4 + mt) * 4
                t = 16 + (p % 2) * 8
                for i in range(4):
                    a(f"v_accvgpr_read_b32 v{t+i}, a{acc+i}")
                if silu:
                    a(f"v_cvt_pk_bf16_f32 v{t+4}, v{t}, v{t+1}")
                    a(f"v_cvt_pk_bf16_f32 v{t+5}, v{t+2}, v{t+3}")
                    a(f"v_lshlrev_b32 v{t}, 16, v{t+4}")
                    a(f"v_and_b32 v{t+1}, 0xffff0000, v{t+4}")
                    a(f"v_lshlrev_b32 v{t+2}, 16, v{t+5}")
                    a(f"v_and_b32 v{t+3}, 0xffff0000, v{t+5}")
                    for i in range(4):
                        a(f"v_mul_f32 v{t+4+i}, 0xbfb8aa3b, v{t+i}")
                    for i in range(4):
                        a(f"v_exp_f32 v{t+4+i}, v{t+4+i}")
                    for i in range(4):
                        a(f"v_add_f32 v{t+4+i}, 1.0, v{t+4+i}")
                    for i in range(4):
                        a(f"v_rcp_f32 v{t+4+i}, v{t+4+i}")
                    for i in range(4):
                        a(f"v_mul_f32 v{t+i}, v{t+i}, v{t+4+i}")
                a(f"v_cvt_pk_bf16_f32 v{t+4}, v{t}, v{t+1}")
                a(f"v_cvt_pk_bf16_f32 v{t+5}, v{t+2}, v{t+3}")
                a(f"buffer_store_dwordx2 v[{t+4}:{t+5}], v10, s[{S_SRDC}:{S_SRDC+3}], s55 offen offset:{p*128}")
            a.lab(f"L_g1_skip{silu}_{mt}")
        if not silu:
            a("s_branch L_g1_fin")
    a.lab("L_g1_fin")
    a("s_waitcnt vmcnt(0)")
    stamp(a, 3)
    stamp_flush(a, 4, 100)
    a.lab("L_g1_end")
    a("s_endpgm")
    return kernel_desc(name, cores[7].vgpr_end, 112, 96), 2 * ASLOT + 4 * 7 * 4096


def load_wphi(a):
    a("v_lshlrev_b32 v2, 2, v0")
    a("v_add_u32 v2, s22, v2")
    a("v_cmp_gt_u32 vcc, 162, v0")
    a("s_and_saveexec_b64 s[24:25], vcc")
    a("buffer_load_dword v3, v2, s[12:15], 0 offen")
    a("v_mul_u32_u24 v4, 57, v0")
    a("v_lshrrev_b32 v4, 9, v4")
    a("v_mul_u32_u24 v5, 9, v4")
    a("v_sub_u32 v5, v0, v5")
    a("v_mul_u32_u24 v4, 80, v4")
    a("v_lshl_add_u32 v4, v5, 3, v4")
    a("s_waitcnt vmcnt(0)")
    a("v_lshlrev_b32 v8, 16, v3")
    a("v_and_b32 v9, 0xffff0000, v3")
    a("ds_write_b64 v4, v[8:9]")
    a("s_mov_b64 exec, s[24:25]")


def feature_map(a, src, out):
    X, P, W0 = 40, 60, 80
    for i in range(9):
        a(f"v_lshlrev_b32 v{X+2*i}, 16, v{src+i}")
        a(f"v_and_b32 v{X+2*i+1}, 0xffff0000, v{src+i}")
    for f in range(18):
        a(f"v_mov_b32 v{P+f}, 0")
    a("v_mov_b32 v39, 0")

    def rd(d):
        w = W0 + (d % 2) * 20
        for j in range(4):
            a(f"ds_read_b128 v[{w+4*j}:{w+4*j+3}], v39 offset:{d*80+16*j}")
        a(f"ds_read_b64 v[{w+16}:{w+17}], v39 offset:{d*80+64}")
    rd(0)
    for d in range(18):
        if d + 1 < 18:
            rd(d + 1)
            a("s_waitcnt lgkmcnt(5)")
        else:
            a("s_waitcnt lgkmcnt(0)")
        w = W0 + (d % 2) * 20
        for f in range(18):
            a(f"v_fmac_f32 v{P+f}, v{X+d}, v{w+f}")
    for i in range(9):
        a(f"v_cvt_pk_bf16_f32 v{X+i}, v{P+2*i}, v{P+2*i+1}")
    for i in range(9):
        a(f"v_lshlrev_b32 v{P+2*i}, 16, v{X+i}")
        a(f"v_and_b32 v{P+2*i+1}, 0xffff0000, v{X+i}")
    a(f"v_max3_f32 v{X}, v{P}, v{P+1}, v{P+2}")
    a(f"v_min3_f32 v{X+1}, v{P}, v{P+1}, v{P+2}")
    for i in range(3, 17, 2):
        a(f"v_max3_f32 v{X}, v{X}, v{P+i}, v{P+i+1}")
        a(f"v_min3_f32 v{X+1}, v{X+1}, v{P+i}, v{P+i+1}")
    a(f"v_max_f32 v{X}, v{X}, v{P+17}")
    a(f"v_min_f32 v{X+1}, v{X+1}, v{P+17}")
    a("s_mov_b32 s26, 0x3fb8aa3b")
    a(f"v_mul_f32 v{X}, s26, v{X}")
    a(f"v_mul_f32 v{X+1}, s26, v{X+1}")
    E = W0
    for f in range(18):
        a(f"v_fma_f32 v{E+f}, v{P+f}, s26, -v{X}")
        a(f"v_fma_f32 v{E+18+f}, -v{P+f}, s26, v{X+1}")
    for f in range(36):
        a(f"v_exp_f32 v{E+f}, v{E+f}")
    for half in range(2):
        b = E + 18 * half
        a(f"v_add_f32 v{X+2+half}, v{b}, v{b+1}")
        for f in range(2, 18):
            a(f"v_add_f32 v{X+2+half}, v{X+2+half}, v{b+f}")
    a(f"v_rcp_f32 v{X+2}, v{X+2}")
    a(f"v_rcp_f32 v{X+3}, v{X+3}")
    a("s_nop 0")
    for half in range(2):
        b = E + 18 * half
        for f in range(18):
            a(f"v_mul_f32 v{b+f}, v{b+f}, v{X+2+half}")
    for i in range(18):
        a(f"v_cvt_pk_bf16_f32 v{out+i}, v{E+2*i}, v{E+2*i+1}")


def attn_common_head(a, endlab):
    a("s_load_dwordx2 s[4:5], s[0:1], 16")
    a("s_load_dwordx2 s[6:7], s[0:1], 72")
    a("s_cmp_ge_u32 s2, 256")
    a(f"s_cbranch_scc1 {endlab}")
    a("s_and_b32 s20, s2, 31")
    a("s_lshr_b32 s21, s2, 5")
    a("s_mul_i32 s22, s20, 648")
    a("s_waitcnt lgkmcnt(0)")
    srd(a, 8, "s6", "s7", S * 3 * D * 2)
    srd_add(a, 8, QKV_OFF)
    srd(a, 12, "s4", "s5", H * DH * DH * 2)
    a("s_lshl_b32 s23, s21, 8")
    a("v_add_u32 v7, s23, v0")
    a("s_movk_i32 s23, 3456")
    a("v_mul_lo_u32 v7, v7, s23")
    a("s_mul_i32 s23, s20, 36")
    a("v_add_u32 v7, s23, v7")


K2_PHI, K2_V = 2048, 26624
K2A_LDS = 43008


def gen_attn_kv(a):
    name = "attn_kv_kernel"
    kernel_head(a, name)
    attn_common_head(a, "L_kv_end")
    srd(a, 16, "s6", "s7", 256 * 1536 * 4)
    srd_add(a, 16, KVP_OFF)
    a("buffer_load_dwordx4 v[20:23], v7, s[8:11], 0 offen offset:1152")
    a("buffer_load_dwordx4 v[24:27], v7, s[8:11], 0 offen offset:1168")
    a("buffer_load_dword v28, v7, s[8:11], 0 offen offset:1184")
    a("buffer_load_dwordx4 v[30:33], v7, s[8:11], 0 offen offset:2304")
    a("buffer_load_dwordx4 v[34:37], v7, s[8:11], 0 offen offset:2320")
    a("buffer_load_dword v38, v7, s[8:11], 0 offen offset:2336")
    load_wphi(a)
    a("s_waitcnt vmcnt(0) lgkmcnt(0)")
    a("s_barrier")
    feature_map(a, 20, 120)
    a("v_mul_u32_u24 v2, 96, v0")
    a(f"ds_write_b128 v2, v[120:123] offset:{K2_PHI}")
    a(f"ds_write_b128 v2, v[124:127] offset:{K2_PHI+16}")
    a(f"ds_write_b128 v2, v[128:131] offset:{K2_PHI+32}")
    a(f"ds_write_b128 v2, v[132:135] offset:{K2_PHI+48}")
    a(f"ds_write_b64 v2, v[136:137] offset:{K2_PHI+64}")
    a("v_lshlrev_b32 v2, 6, v0")
    a("v_mov_b32 v39, 0x3f80")
    a(f"ds_write_b128 v2, v[30:33] offset:{K2_V}")
    a(f"ds_write_b128 v2, v[34:37] offset:{K2_V+16}")
    a(f"ds_write_b64 v2, v[38:39] offset:{K2_V+32}")
    a("s_waitcnt lgkmcnt(0)")
    a("s_barrier")
    a("v_and_b32 v1, 63, v0")
    a("v_lshrrev_b32 v2, 6, v0")
    a("s_nop 0")
    a("v_readfirstlane_b32 s30, v2")
    a("v_lshrrev_b32 v3, 4, v1")
    a("v_bfe_u32 v4, v1, 2, 2")
    a("v_lshl_add_u32 v4, v3, 3, v4")
    a("v_and_b32 v5, 3, v1")
    a("v_lshlrev_b32 v5, 3, v5")
    a("s_and_b32 s31, s30, 1")
    a("s_lshl_b32 s32, s31, 5")
    a("v_lshl_add_u32 v6, v4, 6, v5")
    a(f"v_add_u32 v6, s32, v6")
    a("v_mul_u32_u24 v8, 96, v4")
    a("v_add_u32 v8, v8, v5")
    a("s_lshr_b32 s33, s30, 1")
    a("s_lshl_b32 s33, s33, 5")
    a("v_add_u32 v9, s33, v8")
    a("v_add_u32 v10, 64, v8")
    for t in range(2):
        for i in range(4):
            a(f"v_mov_b32 v{12+4*t+i}, 0")
    for ks in range(8):
        a(f"ds_read_b64_tr_b16 v[24:25], v6 offset:{K2_V + ks*2048}")
        a(f"ds_read_b64_tr_b16 v[26:27], v6 offset:{K2_V + ks*2048 + 256}")
        a(f"ds_read_b64_tr_b16 v[28:29], v9 offset:{K2_PHI + ks*3072}")
        a(f"ds_read_b64_tr_b16 v[30:31], v9 offset:{K2_PHI + ks*3072 + 384}")
        a(f"ds_read_b64_tr_b16 v[32:33], v10 offset:{K2_PHI + ks*3072}")
        a(f"ds_read_b64_tr_b16 v[34:35], v10 offset:{K2_PHI + ks*3072 + 384}")
        a("s_waitcnt lgkmcnt(0)")
        a("v_mfma_f32_16x16x32_bf16 v[12:15], v[24:27], v[28:31], v[12:15]")
        a("v_mfma_f32_16x16x32_bf16 v[16:19], v[24:27], v[32:35], v[16:19]")
        a("s_nop 1")
    a("s_nop 7")
    a("v_and_b32 v2, 15, v1")
    a("v_lshlrev_b32 v2, 7, v2")
    a("v_lshl_add_u32 v2, v3, 4, v2")
    a("s_lshl_b32 s34, s20, 3")
    a("s_add_u32 s34, s34, s21")
    a("s_mul_i32 s34, s34, 6144")
    a("s_lshl_b32 s35, s31, 6")
    a("s_add_u32 s34, s34, s35")
    a("s_lshl_b32 s35, s33, 6")
    a("s_add_u32 s35, s35, s34")
    a("buffer_store_dwordx4 v[12:15], v2, s[16:19], s35 offen")
    a("s_add_u32 s35, s34, 4096")
    a("buffer_store_dwordx4 v[16:19], v2, s[16:19], s35 offen")
    a.lab("L_kv_end")
    a("s_endpgm")
    return kernel_desc(name, 140, 0, 48), K2A_LDS


K2_KVT, K2_PHIQ = 2048, 6144
K2B_LDS = 38912


def gen_attn_o(a):
    name = "attn_o_kernel"
    kernel_head(a, name)
    attn_common_head(a, "L_o_end")
    srd(a, 16, "s6", "s7", 256 * 1536 * 4)
    srd_add(a, 16, KVP_OFF)
    a("buffer_load_dwordx4 v[20:23], v7, s[8:11], 0 offen")
    a("buffer_load_dwordx4 v[24:27], v7, s[8:11], 0 offen offset:16")
    a("buffer_load_dword v28, v7, s[8:11], 0 offen offset:32")
    load_wphi(a)
    a("v_mov_b32 v8, 0")
    a("v_mov_b32 v9, 0")
    a("v_mov_b32 v10, 0")
    a("v_mov_b32 v11, 0")
    a("v_lshlrev_b32 v2, 4, v0")
    a(f"ds_write_b128 v2, v[8:11] offset:{K2_KVT}")
    a("s_mul_i32 s34, s20, 49152")
    a("v_lshlrev_b32 v2, 2, v0")
    for i in range(6):
        for c in range(8):
            a(f"s_add_u32 s35, s34, {c*6144 + i*1024}")
            a(f"buffer_load_dword v{140+i*8+c}, v2, s[16:19], s35 offen")
    a("s_waitcnt vmcnt(0) lgkmcnt(0)")
    a("s_barrier")
    for i in range(6):
        r = 140 + i * 8
        for c in range(1, 8):
            a(f"v_add_f32 v{r}, v{r}, v{r+c}")
        a(f"v_cvt_pk_bf16_f32 v{r}, v{r}, v{r}")
        a(f"v_lshrrev_b32 v3, 5, v0")
        a(f"v_add_u32 v3, {8*i}, v3")
        a("v_and_b32 v4, 31, v0")
        a("v_lshlrev_b32 v5, 7, v4")
        a("v_lshl_add_u32 v5, v3, 1, v5")
        a("v_cmp_gt_u32 vcc, 36, v3")
        a("v_cmp_gt_u32 s[24:25], 18, v4")
        a("s_and_b64 s[24:25], s[24:25], vcc")
        a("s_and_saveexec_b64 s[26:27], s[24:25]")
        a(f"ds_write_b16 v5, v{r} offset:{K2_KVT}")
        a("s_mov_b64 exec, s[26:27]")
        a("v_cmp_eq_u32 s[24:25], 18, v4")
        a("s_and_b64 s[24:25], s[24:25], vcc")
        a("s_and_saveexec_b64 s[26:27], s[24:25]")
        for j in range(4):
            a(f"ds_write_b16 v5, v{r} offset:{K2_KVT + j*512}")
        a("s_mov_b64 exec, s[26:27]")
    feature_map(a, 20, 120)
    a("v_lshlrev_b32 v2, 7, v0")
    a("v_mov_b32 v138, 0")
    a("v_mov_b32 v139, 0")
    a(f"ds_write_b128 v2, v[120:123] offset:{K2_PHIQ}")
    a(f"ds_write_b128 v2, v[124:127] offset:{K2_PHIQ+16}")
    a(f"ds_write_b128 v2, v[128:131] offset:{K2_PHIQ+32}")
    a(f"ds_write_b128 v2, v[132:135] offset:{K2_PHIQ+48}")
    a(f"ds_write_b128 v2, v[136:139] offset:{K2_PHIQ+64}")
    for i in range(4):
        a(f"v_mov_b32 v{8+i}, 0")
    a(f"ds_write_b128 v2, v[8:11] offset:{K2_PHIQ+80}")
    a(f"ds_write_b128 v2, v[8:11] offset:{K2_PHIQ+96}")
    a(f"ds_write_b128 v2, v[8:11] offset:{K2_PHIQ+112}")
    a("s_waitcnt lgkmcnt(0)")
    a("s_barrier")
    a("v_and_b32 v1, 63, v0")
    a("v_and_b32 v2, 15, v1")
    a("v_lshrrev_b32 v3, 4, v1")
    a("v_lshlrev_b32 v4, 7, v2")
    a("v_lshl_add_u32 v4, v3, 4, v4")
    for dt in range(2):
        for ks in range(2):
            a(f"ds_read_b128 v[{16+8*dt+4*ks}:{19+8*dt+4*ks}], v4 offset:{K2_KVT + dt*2048 + ks*64}")
    a("v_and_b32 v5, 0xc0, v0")
    a("v_lshl_add_u32 v5, v5, 7, v4")
    srd(a, 36, "s6", "s7", S * LD_HC)
    srd_add(a, 36, HC_OFF)
    a("s_lshl_b32 s23, s21, 8")
    a("v_and_b32 v6, 0xc0, v0")
    a("v_add_u32 v6, v6, v2")
    a("v_add_u32 v6, s23, v6")
    a(f"s_mov_b32 s23, {LD_HC}")
    a("v_mul_lo_u32 v6, v6, s23")
    a("s_mul_i32 s23, s20, 36")
    a("v_add_u32 v6, s23, v6")
    a("v_lshl_add_u32 v6, v3, 3, v6")
    a("v_cmp_eq_u32 vcc, 0, v3")
    for rt in range(4):
        a(f"ds_read_b128 v[32:35], v5 offset:{K2_PHIQ + rt*2048}")
        a(f"ds_read_b128 v[36:39], v5 offset:{K2_PHIQ + rt*2048 + 64}")
        for i in range(8):
            a(f"v_mov_b32 v{40+i}, 0")
        a("s_waitcnt lgkmcnt(0)")
        a("v_mfma_f32_16x16x32_bf16 v[40:43], v[16:19], v[32:35], v[40:43]")
        a("v_mfma_f32_16x16x32_bf16 v[44:47], v[24:27], v[32:35], v[44:47]")
        a("v_mfma_f32_16x16x32_bf16 v[40:43], v[20:23], v[36:39], v[40:43]")
        a("v_mfma_f32_16x16x32_bf16 v[44:47], v[28:31], v[36:39], v[44:47]")
        a("s_nop 7")
        a("s_nop 1")
        a("v_cvt_pk_bf16_f32 v48, v46, v46")
        a("v_lshlrev_b32 v48, 16, v48")
        a("v_add_f32 v48, 0x358637bd, v48")
        a("v_cvt_pk_bf16_f32 v48, v48, v48")
        a("v_lshlrev_b32 v48, 16, v48")
        a("v_rcp_f32 v49, v48")
        a("v_cvt_pk_bf16_f32 v50, v40, v41")
        a("v_cvt_pk_bf16_f32 v51, v42, v43")
        a("v_cvt_pk_bf16_f32 v52, v44, v45")
        for j, src in enumerate((50, 51, 52)):
            a(f"v_lshlrev_b32 v{40+2*j}, 16, v{src}")
            a(f"v_and_b32 v{41+2*j}, 0xffff0000, v{src}")
        for j in range(6):
            a(f"v_mul_f32 v53, v{40+j}, v49")
            a(f"v_fma_f32 v54, -v53, v48, v{40+j}")
            a(f"v_fma_f32 v{40+j}, v54, v49, v53")
        a("v_cvt_pk_bf16_f32 v50, v40, v41")
        a("v_cvt_pk_bf16_f32 v51, v42, v43")
        a("v_cvt_pk_bf16_f32 v52, v44, v45")
        a(f"s_mov_b32 s23, {rt*16*LD_HC}")
        a("buffer_store_dwordx2 v[50:51], v6, s[36:39], s23 offen")
        a("s_and_saveexec_b64 s[26:27], vcc")
        a("buffer_store_dword v52, v6, s[36:39], s23 offen offset:32")
        a("s_mov_b64 exec, s[26:27]")
    a.lab("L_o_end")
    a("s_endpgm")
    return kernel_desc(name, 192, 0, 48), K2B_LDS


K3_NST = 34
SLAB = 128 * 192 * 4


def gen_gemm2(a):
    name = "gemm2_kernel"
    kernel_head(a, name)
    a("s_load_dwordx2 s[34:35], s[0:1], 24")
    a("s_load_dwordx2 s[36:37], s[0:1], 48")
    a("s_load_dwordx2 s[38:39], s[0:1], 72")
    a("s_cmp_ge_u32 s2, 240")
    a("s_cbranch_scc1 L_g2_end")
    stamp(a, 0)
    a("s_and_b32 s40, s2, 7")
    a("s_lshr_b32 s41, s2, 3")
    a("s_cmp_ge_u32 s41, 15")
    a("s_cselect_b32 s42, 1, 0")
    a("s_lshl_b32 s40, s40, 1")
    a("s_add_u32 s40, s40, s42")
    a("s_mul_i32 s42, s42, 15")
    a("s_sub_u32 s41, s41, s42")
    a("s_mul_i32 s42, s41, 43")
    a("s_lshr_b32 s42, s42, 7")
    a("s_mul_i32 s43, s42, 3")
    a("s_sub_u32 s43, s41, s43")
    a("s_waitcnt lgkmcnt(0)")
    srd(a, S_SRDA, "s38", "s39", S * LD_HC)
    srd_add(a, S_SRDA, HC_OFF)
    a(f"s_mov_b32 s{S_SRDB+3}, 0x00020000")
    a(f"s_mov_b32 s44, {D*D*2}")
    a(f"s_mov_b32 s45, {F*D*2}")
    a("s_movk_i32 s46, 1152")
    NB, NA = 4, 3
    gemm_lane_setup(a, NB, 3 * 4096, NA * ASLOT, 46, LD_HC)
    gemm_wave_setup(a, 3, 46)
    a("s_lshl_b32 s31, s40, 7")
    a("s_lshl_b32 s32, s30, 3")
    a("s_add_u32 s31, s31, s32")
    a(f"s_mul_i32 s{S_ABASE}, s31, {LD_HC}")
    a(f"s_mul_i32 s31, s42, {K3_NST*64}")
    a(f"s_add_u32 s{S_ABASE}, s{S_ABASE}, s31")
    a(f"s_mov_b32 s{S_APIECE}, {64*LD_HC}")
    a(f"s_mov_b32 s{S_LDB32}, 0")
    a(f"s_mul_i32 s47, s42, {K3_NST}")
    a("s_mul_i32 s48, s43, 384")
    for i in range(48):
        a(f"v_accvgpr_write_b32 a{i}, 0")

    def pre_step(aa, u):
        aa("s_sub_u32 s49, s47, 18")
        aa("s_cmp_lt_u32 s47, 18")
        aa("s_cselect_b32 s49, s47, s49")
        aa(f"s_cselect_b32 s{S_SRDB}, s34, s36")
        aa(f"s_cselect_b32 s{S_SRDB+1}, s35, s37")
        aa(f"s_cselect_b32 s{S_SRDB+2}, s44, s45")
        aa(f"s_mul_i32 s{S_BK}, s49, {32*1152}")
        aa(f"s_add_u32 s{S_BK}, s{S_BK}, s48")
        aa("s_add_u32 s47, s47, 1")
    c = Core(3, K3_NST, NA, NB, pre_step=pre_step)
    c.emit(a)
    stamp(a, 2)
    a("v_and_b32 v10, 15, v1")
    a("s_lshr_b32 s31, s30, 2")
    a("s_lshl_b32 s31, s31, 6")
    a("v_add_u32 v10, s31, v10")
    a("v_mul_u32_u24 v10, 768, v10")
    a("v_lshrrev_b32 v11, 4, v1")
    a("v_lshl_add_u32 v10, v11, 4, v10")
    a("s_and_b32 s31, s30, 3")
    a("s_lshl_b32 s31, s31, 6")
    a("v_add_u32 v10, s31, v10")
    a("s_mul_i32 s50, s40, 3")
    a("s_add_u32 s50, s50, s43")
    srd(a, S_SRDC, "s38", "s39", 240 * SLAB)
    srd_add(a, S_SRDC, PART_OFF)
    a("s_mul_i32 s51, s50, 5")
    a(f"s_mul_i32 s52, s51, {SLAB}")
    a(f"s_mul_i32 s53, s42, {SLAB}")
    a("s_add_u32 s53, s53, s52")
    a("s_nop 7")
    for mt in range(4):
        a(f"s_add_u32 s54, s53, {mt*12288}")
        for p in range(3):
            acc = (p * 4 + mt) * 4
            a(f"buffer_store_dwordx4 a[{acc}:{acc+3}], v10, s[{S_SRDC}:{S_SRDC+3}], s54 offen offset:{p*256} sc1")
    a("s_waitcnt vmcnt(0)")
    a("s_barrier")
    a("s_load_dwordx2 s[56:57], s[0:1], 64")
    a("s_waitcnt lgkmcnt(0)")
    srd(a, 60, "s56", "s57", 256)
    a("v_mov_b32 v12, 1")
    a("s_lshl_b32 s31, s50, 2")
    a("v_mov_b32 v13, s31")
    a("v_cmp_eq_u32 vcc, 0, v0")
    a("s_and_saveexec_b64 s[58:59], vcc")
    a("buffer_atomic_add v12, v13, s[60:63], 0 offen sc0")
    a("s_waitcnt vmcnt(0)")
    a("v_mov_b32 v13, 0")
    a("ds_write_b32 v13, v12")
    a("s_waitcnt lgkmcnt(0)")
    a("s_mov_b64 exec, s[58:59]")
    a("s_barrier")
    a("v_mov_b32 v13, 0")
    a("ds_read_b32 v12, v13")
    a("s_waitcnt lgkmcnt(0)")
    a("v_readfirstlane_b32 s55, v12")
    a("s_nop 3")
    a("s_cmp_eq_u32 s55, 4")
    a("s_cbranch_scc0 L_g2_fin")
    a("buffer_inv sc1")
    a("s_waitcnt vmcnt(0)")
    a("s_load_dwordx2 s[56:57], s[0:1], 0")
    a("s_load_dwordx2 s[58:59], s[0:1], 56")
    a("s_waitcnt lgkmcnt(0)")
    srd(a, 60, "s56", "s57", S * D * 2)
    srd(a, 64, "s58", "s59", S * D * 2)
    a("v_and_b32 v14, 15, v1")
    a("s_lshr_b32 s31, s30, 2")
    a("s_lshl_b32 s31, s31, 6")
    a("s_lshl_b32 s32, s40, 7")
    a("s_add_u32 s31, s31, s32")
    a("v_add_u32 v14, s31, v14")
    a("v_mul_u32_u24 v14, 1152, v14")
    a("v_lshl_add_u32 v14, v11, 3, v14")
    a("s_and_b32 s31, s30, 3")
    a("s_lshl_b32 s31, s31, 5")
    a("s_add_u32 s31, s31, s48")
    a("v_add_u32 v14, s31, v14")
    for mt in range(4):
        for p in range(3):
            acc = (p * 4 + mt) * 4
            for j in range(4):
                a(f"s_add_u32 s31, s42, {j+1}")
                a("s_cmp_ge_u32 s31, 5")
                a("s_cselect_b32 s32, 5, 0")
                a("s_sub_u32 s31, s31, s32")
                a(f"s_mul_i32 s31, s31, {SLAB}")
                a("s_add_u32 s31, s31, s52")
                a(f"s_add_u32 s31, s31, {mt*12288}")
                a(f"buffer_load_dwordx4 v[{16+4*j}:{19+4*j}], v10, s[{S_SRDC}:{S_SRDC+3}], s31 offen offset:{p*256} sc1")
            a(f"s_mov_b32 s31, {mt*16*1152}")
            a(f"buffer_load_dwordx2 v[32:33], v14, s[60:63], s31 offen offset:{p*128}")
            for i in range(4):
                a(f"v_accvgpr_read_b32 v{36+i}, a{acc+i}")
            a("s_waitcnt vmcnt(0)")
            for j in range(4):
                for i in range(4):
                    a(f"v_add_f32 v{36+i}, v{36+i}, v{16+4*j+i}")
            a("v_lshlrev_b32 v40, 16, v32")
            a("v_and_b32 v41, 0xffff0000, v32")
            a("v_lshlrev_b32 v42, 16, v33")
            a("v_and_b32 v43, 0xffff0000, v33")
            for i in range(4):
                a(f"v_add_f32 v{36+i}, v{36+i}, v{40+i}")
            a("v_cvt_pk_bf16_f32 v40, v36, v37")
            a("v_cvt_pk_bf16_f32 v41, v38, v39")
            a(f"buffer_store_dwordx2 v[40:41], v14, s[64:67], s31 offen offset:{p*128}")
    a.lab("L_g2_fin")
    a("s_waitcnt vmcnt(0)")
    stamp(a, 3)
    stamp_flush(a, 4, 100)
    a.lab("L_g2_end")
    a("s_endpgm")
    return kernel_desc(name, c.vgpr_end, 48, 96), NA * ASLOT + NB * 3 * 4096


def main():
    a = A()
    descs = []
    launches = []
    descs.append(gen_ln(a))
    launches.append("; @launch kernel=ln_kernel grid=(512,1,1) block=(256,1,1) lds=0")
    d, lds = gen_gemm1(a)
    descs.append(d)
    launches.append(f"; @launch kernel=gemm1_kernel grid=(256,1,1) block=(512,1,1) lds={lds}")
    d, lds = gen_attn_kv(a)
    descs.append(d)
    launches.append(f"; @launch kernel=attn_kv_kernel grid=(256,1,1) block=(256,1,1) lds={lds}")
    d, lds = gen_attn_o(a)
    descs.append(d)
    launches.append(f"; @launch kernel=attn_o_kernel grid=(256,1,1) block=(256,1,1) lds={lds}")
    d, lds = gen_gemm2(a)
    descs.append(d)
    launches.append(f"; @launch kernel=gemm2_kernel grid=(240,1,1) block=(512,1,1) lds={lds}")
    hdr = open(f"cdna_kernels/{NAME}.s.ref").read().split("\n")
    hdr = [l for l in hdr if l.startswith(";") and not l.startswith("; @launch")]
    out = "\n".join(hdr) + "\n" + "\n".join(launches) + "\n"
    out += '.amdgcn_target "amdgcn-amd-amdhsa--gfx950"\n.text\n'
    out += "\n".join(a.L) + "\n"
    out += '.section .rodata,"a"\n.p2align 6\n' + "".join(descs)
    dst = sys.argv[1] if len(sys.argv) > 1 else f"cdna_kernels/{NAME}.s"
    open(dst, "w").write(out)
    print("wrote", dst, len(out), "bytes")


if __name__ == "__main__":
    main()
```

```python
import sys

NAME = "parallel_sum__linear_kernel_hedgehog__dense_activation_silu__prompt"

S, D, H, DH, F = 2048, 576, 32, 18, 4608
KT = D + F
LD_HC = KT * 2
XN_OFF = 0
HC_OFF = 0x400000
QKV_OFF = 0x1C00000
KVP_OFF = 0x2400000
PART_OFF = 0x3000000
WS_SIZE = 268435456


class A:
    def __init__(s):
        s.L = []

    def __call__(s, x):
        s.L.append('    ' + x)

    def lab(s, x):
        s.L.append(x + ':')

    def c(s, x):
        s.L.append('    ; ' + x)

    def ext(s, lines):
        s.L.extend(lines)


def sel(a, dst, v1, v2):
    a(f"s_mov_b32 s{dst}, {v1}")
    a(f"s_mov_b32 s33, {v2}")
    a(f"s_cselect_b32 s{dst}, s{dst}, s33")


def srd(a, base, lo, hi, nbytes):
    a(f"s_mov_b32 s{base}, {lo}")
    a(f"s_mov_b32 s{base+1}, {hi}")
    a(f"s_mov_b32 s{base+2}, {nbytes}")
    a(f"s_mov_b32 s{base+3}, 0x00020000")


def srd_add(a, base, off):
    a(f"s_add_u32 s{base}, s{base}, {off}")
    a(f"s_addc_u32 s{base+1}, s{base+1}, 0")


STAMPS = len(sys.argv) > 2 and sys.argv[2] == "stamp"
STPOL = sys.argv[3] if len(sys.argv) > 3 else ""


def stamp(a, idx):
    if not STAMPS:
        return
    a("s_memtime s[60:61]")
    a("s_waitcnt lgkmcnt(0)")
    a(f"s_mov_b32 s{62+idx}, s60")
    a("s_memrealtime s[60:61]")
    a("s_waitcnt lgkmcnt(0)")
    a(f"s_mov_b32 s{66+idx}, s60")


def stamp_flush(a, n, wg):
    if not STAMPS:
        return
    a("s_load_dwordx2 s[60:61], s[0:1], 72")
    a("s_waitcnt lgkmcnt(0)")
    srd(a, 72, "s60", "s61", WS_SIZE)
    a("v_cmp_eq_u32 vcc, 0, v0")
    a("s_and_saveexec_b64 s[76:77], vcc")
    a("s_lshl_b32 s60, s2, 5")
    a("s_add_u32 s60, s60, 0xF000000")
    a("v_mov_b32 v10, s60")
    for i in range(8):
        a(f"v_mov_b32 v11, s{62+i}")
        a(f"buffer_store_dword v11, v10, s[72:75], 0 offen offset:{4*i}")
    a("s_mov_b64 exec, s[76:77]")


def kernel_head(a, name):
    a.L.append(f".globl {name}")
    a.L.append(".p2align 8")
    a.L.append(f".type {name},@function")
    a.L.append(f"{name}:")
    if STAMPS:
        a("s_memrealtime s[90:91]")
        a("s_waitcnt lgkmcnt(0)")


def kstamp_end(a, idx):
    if not STAMPS:
        return
    a("s_waitcnt vmcnt(0) lgkmcnt(0)")
    a("s_memrealtime s[92:93]")
    a("s_load_dwordx2 s[84:85], s[0:1], 72")
    a("s_waitcnt lgkmcnt(0)")
    srd(a, 80, "s84", "s85", WS_SIZE)
    a("v_cmp_eq_u32 vcc, 0, v0")
    a("s_and_saveexec_b64 s[86:87], vcc")
    a("s_lshl_b32 s88, s2, 3")
    a(f"s_add_u32 s88, s88, {0xF100000 + idx*65536}")
    a("v_mov_b32 v10, s88")
    a("v_mov_b32 v11, s90")
    a("buffer_store_dword v11, v10, s[80:83], 0 offen")
    a("v_mov_b32 v11, s92")
    a("buffer_store_dword v11, v10, s[80:83], 0 offen offset:4")
    a("s_mov_b64 exec, s[86:87]")


def kernel_desc(name, vgpr, agpr, sgpr=96):
    acc = (vgpr + 3) // 4 * 4
    nfv = acc + agpr
    return f""".amdhsa_kernel {name}
  .amdhsa_next_free_vgpr {nfv}
  .amdhsa_next_free_sgpr {sgpr}
  .amdhsa_accum_offset {acc}
  .amdhsa_group_segment_fixed_size 0
  .amdhsa_kernarg_size 80
  .amdhsa_user_sgpr_count 2
  .amdhsa_user_sgpr_kernarg_segment_ptr 1
  .amdhsa_system_sgpr_workgroup_id_x 1
.end_amdhsa_kernel
"""


def dpp_reduce_sum(a, v):
    for sh in (1, 2, 4, 8):
        a("s_nop 1")
        a(f"v_add_f32_dpp v{v}, v{v}, v{v} row_shr:{sh} row_mask:0xf bank_mask:0xf bound_ctrl:0")
    a("s_nop 1")
    a(f"v_add_f32_dpp v{v}, v{v}, v{v} row_bcast:15 row_mask:0xa bank_mask:0xf")
    a("s_nop 1")
    a(f"v_add_f32_dpp v{v}, v{v}, v{v} row_bcast:31 row_mask:0xc bank_mask:0xf")
    a("s_nop 1")


def gen_ln(a):
    name = "ln_kernel"
    kernel_head(a, name)
    a("s_load_dwordx2 s[4:5], s[0:1], 0")
    a("s_load_dwordx2 s[6:7], s[0:1], 72")
    a("s_cmp_ge_u32 s2, 512")
    a("s_cbranch_scc1 L_ln_end")
    a("v_lshrrev_b32 v2, 6, v0")
    a("v_and_b32 v1, 63, v0")
    a("s_lshl_b32 s3, s2, 2")
    a("v_add_u32 v2, s3, v2")
    a("s_movk_i32 s3, 1152")
    a("v_mul_lo_u32 v2, v2, s3")
    a("s_waitcnt lgkmcnt(0)")
    srd(a, 8, "s4", "s5", S * D * 2)
    srd(a, 12, "s6", "s7", S * D * 2)
    a("v_lshl_add_u32 v3, v1, 4, v2")
    a("v_lshlrev_b32 v4, 2, v1")
    a("v_add_u32 v4, 1024, v4")
    a("v_add_u32 v4, v4, v2")
    a("v_mov_b32 v12, 0")
    a("v_cmp_gt_u32 vcc, 32, v1")
    a("buffer_load_dwordx4 v[8:11], v3, s[8:11], 0 offen")
    a("s_and_saveexec_b64 s[16:17], vcc")
    a("buffer_load_dword v12, v4, s[8:11], 0 offen")
    a("s_mov_b64 exec, s[16:17]")
    a("s_waitcnt vmcnt(0)")
    for i in range(5):
        src = 8 + i
        a(f"v_lshlrev_b32 v{16+2*i}, 16, v{src}")
        a(f"v_and_b32 v{17+2*i}, 0xffff0000, v{src}")
    a("v_add_f32 v26, v16, v17")
    for i in range(2, 10):
        a(f"v_add_f32 v26, v26, v{16+i}")
    dpp_reduce_sum(a, 26)
    a("v_readlane_b32 s18, v26, 63")
    a("s_nop 3")
    a("v_mov_b32 v27, s18")
    a("v_mul_f32 v27, 0x3ae38e39, v27")
    a("v_mov_b32 v26, 0")
    for i in range(8):
        a(f"v_sub_f32 v28, v{16+i}, v27")
        a("v_fmac_f32 v26, v28, v28")
    a("v_sub_f32 v28, v24, v27")
    a("v_mul_f32 v29, v28, v28")
    a("v_sub_f32 v28, v25, v27")
    a("v_fmac_f32 v29, v28, v28")
    a("v_cndmask_b32 v29, 0, v29, vcc")
    a("v_add_f32 v26, v26, v29")
    dpp_reduce_sum(a, 26)
    a("v_readlane_b32 s19, v26, 63")
    a("s_nop 3")
    a("v_mov_b32 v28, s19")
    a("v_mul_f32 v28, 0x3ae38e39, v28")
    a("v_cvt_pk_bf16_f32 v27, v27, v28")
    a("v_and_b32 v28, 0xffff0000, v27")
    a("v_lshlrev_b32 v27, 16, v27")
    a("v_add_f32 v28, 0x3727c5ac, v28")
    a("v_cvt_pk_bf16_f32 v28, v28, v28")
    a("v_lshlrev_b32 v28, 16, v28")
    a("v_sqrt_f32 v28, v28")
    a("s_nop 0")
    a("v_cvt_pk_bf16_f32 v28, v28, v28")
    a("v_lshlrev_b32 v28, 16, v28")
    a("v_rcp_f32 v29, v28")
    a("s_nop 0")
    for i in range(5):
        e0, e1 = 16 + 2 * i, 17 + 2 * i
        a(f"v_sub_f32 v{e0}, v{e0}, v27")
        a(f"v_sub_f32 v{e1}, v{e1}, v27")
        a(f"v_cvt_pk_bf16_f32 v30, v{e0}, v{e1}")
        a(f"v_lshlrev_b32 v{e0}, 16, v30")
        a(f"v_and_b32 v{e1}, 0xffff0000, v30")
        for e in (e0, e1):
            a(f"v_mul_f32 v30, v{e}, v29")
            a(f"v_fma_f32 v31, -v30, v28, v{e}")
            a(f"v_fma_f32 v{e}, v31, v29, v30")
        a(f"v_cvt_pk_bf16_f32 v{8+i}, v{e0}, v{e1}")
    a("buffer_store_dwordx4 v[8:11], v3, s[12:15], 0 offen")
    a("s_and_saveexec_b64 s[16:17], vcc")
    a("buffer_store_dword v12, v4, s[12:15], 0 offen")
    a("s_mov_b64 exec, s[16:17]")
    kstamp_end(a, 0)
    a.lab("L_ln_end")
    a("s_endpgm")
    return kernel_desc(name, 32, 0, 96)


S_SRDA, S_SRDB, S_SRDC = 4, 8, 12
S_ABASE, S_BK, S_LDB32, S_T = 16, 17, 18, 19
S_OFFB = 20
S_M0B = 24
S_W1024 = 28
S_APIECE = 29
V_DA, V_DB, V_A0, V_A1, V_B0 = 2, 3, 4, 5, 6
V_FR = 16

ASLOT = 16384


class Core:
    def __init__(s, NP, nsteps, NA, NB, bslot_np=None, pre_step=None):
        s.NP, s.nsteps, s.NA, s.NB = NP, nsteps, NA, NB
        s.bslot = (bslot_np or NP) * 4096
        s.b_base = NA * ASLOT
        s.nblk = (nsteps + 1) // 2
        s.out = []
        s.pre_step = pre_step
        s.njb = (4 * NP + 7) // 8
        s.frag_x = V_FR
        s.frag_y = V_FR + 16 + 4 * NP
        s.vgpr_end = s.frag_y + 16 + 4 * NP

    def bslot_base(s, u):
        return s.b_base + (u % s.NB) * s.bslot

    def dma_B(s, u):
        groups = []
        for j in range(s.njb):
            g = [f"s_add_u32 m0, s{S_M0B+j}, {s.bslot_base(u)}",
                 f"s_add_u32 s{S_T}, s{S_BK}, s{S_OFFB+j}",
                 f"buffer_load_dwordx4 v{V_DB}, s[{S_SRDB}:{S_SRDB+3}], s{S_T} offen lds"]
            groups.append(g)
            s.out.append(u - 2)
        return groups

    def dma_A(s, blk):
        groups = []
        for j in range(2):
            g = [f"s_add_u32 m0, s{S_W1024}, {(blk % s.NA) * ASLOT + j * 8192}",
                 f"s_add_u32 s{S_T}, s{S_ABASE}, {blk * 128}"]
            if j:
                g.append(f"s_add_u32 s{S_T}, s{S_T}, s{S_APIECE}")
            g.append(f"buffer_load_dwordx4 v{V_DA}, s[{S_SRDA}:{S_SRDA+3}], s{S_T} offen lds")
            groups.append(g)
            s.out.append(2 * blk - 2)
        return groups

    def frag_reads(s, u, fr):
        ins = []
        va = V_A0 + (u & 1)
        aoff = ((u // 2) % s.NA) * ASLOT
        for mt in range(4):
            ins.append([f"ds_read_b128 v[{fr+4*mt}:{fr+4*mt+3}], v{va} offset:{aoff + mt*2048}"])
        vb = V_B0 + (u % s.NB)
        for p in range(s.NP):
            r = fr + 16 + 4 * p
            ins.append([f"ds_read_b64_tr_b16 v[{r}:{r+1}], v{vb} offset:{p*4096}"])
            ins.append([f"ds_read_b64_tr_b16 v[{r+2}:{r+3}], v{vb} offset:{p*4096+512}"])
        return ins

    def wait_for(s, deadline):
        last = -1
        for i, d in enumerate(s.out):
            if d <= deadline:
                last = i
        n = len(s.out) - 1 - last
        s.out = s.out[last + 1:]
        return n

    def emit(s, a):
        NP = s.NP
        for u in range(min(s.NB, s.nsteps)):
            if s.pre_step:
                s.pre_step(a, u)
            for g in s.dma_B(u):
                for x in g:
                    a(x)
            a(f"s_add_u32 s{S_BK}, s{S_BK}, s{S_LDB32}")
            if u < s.NA and u < s.nblk:
                for g in s.dma_A(u):
                    for x in g:
                        a(x)
        n = s.wait_for(-1)
        a(f"s_waitcnt vmcnt({n})")
        a("s_barrier")
        for g in s.frag_reads(0, s.frag_x):
            for x in g:
                a(x)
        a("s_waitcnt lgkmcnt(0)")
        a("s_barrier")
        stamp(a, 1)
        for u in range(s.nsteps):
            cur = s.frag_x if u % 2 == 0 else s.frag_y
            nxt = s.frag_y if u % 2 == 0 else s.frag_x
            fill = []
            if u + 1 < s.nsteps:
                fill += s.frag_reads(u + 1, nxt)
            if u + s.NB < s.nsteps:
                if s.pre_step:
                    tmp = A()
                    s.pre_step(tmp, u + s.NB)
                    fill.append([x.strip() for x in tmp.L])
                gs = s.dma_B(u + s.NB)
                gs[-1] = gs[-1] + [f"s_add_u32 s{S_BK}, s{S_BK}, s{S_LDB32}"]
                fill += gs
            if u % 2 == 1:
                blk = (u - 1) // 2 + s.NA
                if blk < s.nblk:
                    fill += s.dma_A(blk)
            mf = []
            for p in range(NP):
                for mt in range(4):
                    acc = (p * 4 + mt) * 4
                    mf.append(f"v_mfma_f32_16x16x32_bf16 a[{acc}:{acc+3}], v[{cur+16+4*p}:{cur+16+4*p+3}], v[{cur+4*mt}:{cur+4*mt+3}], a[{acc}:{acc+3}]")
            nm, nf = len(mf), len(fill)
            fi = 0
            for i, m in enumerate(mf):
                a(m)
                tgt = (i + 1) * nf // nm if i + 1 < nm else nf
                tgt = min(nf, max(tgt, 0))
                while fi < tgt:
                    for x in fill[fi]:
                        a(x)
                    fi += 1
            if u + 1 < s.nsteps:
                n = s.wait_for(u)
                a(f"s_waitcnt vmcnt({n}) lgkmcnt(0)")
                a("s_barrier")


def gemm_lane_setup(a, NB, bslot, b_base, ldb2_sgpr, lda2):
    a("v_and_b32 v1, 63, v0")
    a("v_lshrrev_b32 v10, 6, v0")
    a("s_nop 0")
    a("v_readfirstlane_b32 s30, v10")
    a("v_lshrrev_b32 v10, 3, v1")
    a("v_and_b32 v11, 7, v1")
    a("v_xor_b32 v11, v11, v10")
    a("v_lshlrev_b32 v11, 4, v11")
    a(f"s_mov_b32 s31, {lda2}")
    a(f"v_mul_lo_u32 v{V_DA}, v10, s31")
    a(f"v_add_u32 v{V_DA}, v{V_DA}, v11")
    a("v_lshrrev_b32 v11, 4, v1")
    a("v_and_b32 v11, 1, v11")
    a("s_and_b32 s31, s30, 1")
    a("s_lshl_b32 s31, s31, 1")
    a("v_or_b32 v11, s31, v11")
    a("v_bfe_u32 v12, v1, 1, 2")
    a("v_xor_b32 v12, v12, v11")
    a("v_lshlrev_b32 v12, 5, v12")
    a("v_and_b32 v13, 1, v1")
    a("v_lshl_add_u32 v12, v13, 4, v12")
    a(f"v_mul_lo_u32 v{V_DB}, v10, s{ldb2_sgpr}")
    a(f"v_add_u32 v{V_DB}, v{V_DB}, v12")
    a("v_and_b32 v10, 15, v1")
    a("v_lshrrev_b32 v11, 4, v1")
    a("v_and_b32 v12, 7, v10")
    a("v_xor_b32 v12, v12, v11")
    a("s_lshr_b32 s31, s30, 2")
    a("s_lshl_b32 s31, s31, 13")
    a("v_lshlrev_b32 v13, 7, v10")
    a("v_add_u32 v13, s31, v13")
    a(f"v_lshl_add_u32 v{V_A0}, v12, 4, v13")
    a("v_xor_b32 v12, 4, v12")
    a(f"v_lshl_add_u32 v{V_A1}, v12, 4, v13")
    a("v_bfe_u32 v10, v1, 2, 2")
    a("v_lshrrev_b32 v12, 1, v10")
    a("v_and_b32 v13, 1, v11")
    a("v_lshl_or_b32 v12, v13, 1, v12")
    a("s_and_b32 s31, s30, 3")
    a("v_xor_b32 v12, s31, v12")
    a("v_lshlrev_b32 v12, 5, v12")
    a("v_lshl_add_u32 v13, v11, 3, v10")
    a("v_lshl_add_u32 v12, v13, 7, v12")
    a("v_and_b32 v13, 3, v1")
    a("v_lshl_add_u32 v12, v13, 3, v12")
    for sl in range(NB):
        a(f"v_add_u32 v{V_B0+sl}, {b_base + sl*bslot}, v12")


def gemm_wave_setup(a, NP, ldb2_sgpr):
    njb = (4 * NP + 7) // 8
    a(f"s_lshl_b32 s{S_W1024}, s30, 10")
    a("s_and_b32 s31, s30, 3")
    a(f"s_mul_i32 s32, s31, s{ldb2_sgpr}")
    a("s_lshl_b32 s32, s32, 3")
    for j in range(njb):
        a(f"s_add_u32 s33, s30, {8*j}")
        a("s_lshr_b32 s33, s33, 2")
        a(f"s_min_u32 s33, s33, {NP-1}")
        a(f"s_lshl_b32 s{S_OFFB+j}, s33, 7")
        a(f"s_add_u32 s{S_OFFB+j}, s{S_OFFB+j}, s32")
        a(f"s_lshl_b32 s{S_M0B+j}, s33, 12")
        a("s_lshl_b32 s33, s31, 10")
        a(f"s_add_u32 s{S_M0B+j}, s{S_M0B+j}, s33")


def gen_gemm1(a):
    name = "gemm1_kernel"
    kernel_head(a, name)
    a("s_load_dwordx2 s[34:35], s[0:1], 8")
    a("s_load_dwordx2 s[36:37], s[0:1], 40")
    a("s_load_dwordx2 s[38:39], s[0:1], 72")
    a("s_cmp_ge_u32 s2, 256")
    a("s_cbranch_scc1 L_g1_end")
    stamp(a, 0)
    a("s_and_b32 s40, s2, 7")
    a("s_lshr_b32 s41, s2, 3")
    a("s_and_b32 s42, s41, 1")
    a("s_lshl_b32 s40, s40, 1")
    a("s_add_u32 s40, s40, s42")
    a("s_lshr_b32 s41, s41, 1")
    a("s_waitcnt lgkmcnt(0)")
    srd(a, S_SRDA, "s38", "s39", S * D * 2)
    a("s_mul_i32 s47, s40, 7")
    a("s_sub_u32 s48, s40, 4")
    a("s_mul_i32 s48, s48, 6")
    a("s_cmp_lt_u32 s40, 4")
    a("s_cselect_b32 s47, s47, s48")
    a(f"s_cselect_b32 s{S_SRDB}, s34, s36")
    a(f"s_cselect_b32 s{S_SRDB+1}, s35, s37")
    sel(a, S_SRDB + 2, D * 3 * D * 2, D * F * 2)
    a(f"s_mov_b32 s{S_SRDB+3}, 0x00020000")
    sel(a, 46, 3 * D * 2, F * 2)
    sel(a, 48, QKV_OFF, HC_OFF + D * 2)
    sel(a, S_SRDC + 2, S * 3 * D * 2, S * LD_HC - D * 2)
    sel(a, 50, 3 * D * 2, LD_HC)
    sel(a, 51, 0, 1)
    a(f"s_mov_b32 s{S_SRDC+3}, 0x00020000")
    a(f"s_add_u32 s{S_SRDC}, s38, s48")
    a(f"s_addc_u32 s{S_SRDC+1}, s39, 0")
    NB, NA = 4, 2
    gemm_lane_setup(a, NB, 7 * 4096, NA * ASLOT, 46, D * 2)
    gemm_wave_setup(a, 7, 46)
    a("s_lshl_b32 s31, s41, 7")
    a("s_lshl_b32 s32, s30, 3")
    a("s_add_u32 s31, s31, s32")
    a(f"s_mul_i32 s{S_ABASE}, s31, {D*2}")
    a(f"s_mov_b32 s{S_APIECE}, {64*D*2}")
    a(f"s_lshl_b32 s{S_BK}, s47, 7")
    a(f"s_lshl_b32 s{S_LDB32}, s46, 5")
    for i in range(112):
        a(f"v_accvgpr_write_b32 a{i}, 0")
    a("s_cmp_lt_u32 s40, 3")
    a("s_cbranch_scc0 L_g1_np6")
    cores = {}
    for NP in (7, 6):
        if NP == 6:
            a("s_branch L_g1_epi")
            a.lab("L_g1_np6")
        c = Core(NP, 18, NA, NB, bslot_np=7)
        cores[NP] = c
        c.emit(a)
        a(f"s_mov_b32 s52, {NP}")
    a.lab("L_g1_epi")
    stamp(a, 2)
    PIT = 7 * 128 + 16
    a("s_waitcnt lgkmcnt(0)")
    a("s_barrier")
    a("v_and_b32 v10, 15, v1")
    a("s_lshr_b32 s31, s30, 2")
    a("s_lshl_b32 s31, s31, 6")
    a("v_add_u32 v10, s31, v10")
    a(f"v_mul_u32_u24 v10, {PIT}, v10")
    a("v_lshrrev_b32 v11, 4, v1")
    a("v_lshl_add_u32 v10, v11, 3, v10")
    a("s_and_b32 s31, s30, 3")
    a("s_lshl_b32 s31, s31, 5")
    a("v_add_u32 v10, s31, v10")
    a("s_mov_b32 s56, 0xbfb8aa3b")
    a("s_mov_b32 s57, 0xbfb8aa3b")
    a("s_cmp_eq_u32 s51, 0")
    a("s_cbranch_scc0 L_g1_silu")
    for silu in (0, 1):
        if silu:
            a.lab("L_g1_silu")
        for mt in range(4):
            for p in range(7):
                if p == 6:
                    a(f"s_cmp_lt_u32 s52, 7")
                    a(f"s_cbranch_scc1 L_g1_skip{silu}_{mt}")
                acc = (p * 4 + mt) * 4
                t = 16 + (p % 2) * 8
                for i in range(4):
                    a(f"v_accvgpr_read_b32 v{t+i}, a{acc+i}")
                if silu:
                    a(f"v_cvt_pk_bf16_f32 v{t+4}, v{t}, v{t+1}")
                    a(f"v_cvt_pk_bf16_f32 v{t+5}, v{t+2}, v{t+3}")
                    a(f"v_lshlrev_b32 v{t}, 16, v{t+4}")
                    a(f"v_and_b32 v{t+1}, 0xffff0000, v{t+4}")
                    a(f"v_lshlrev_b32 v{t+2}, 16, v{t+5}")
                    a(f"v_and_b32 v{t+3}, 0xffff0000, v{t+5}")
                    a(f"v_pk_mul_f32 v[{t+4}:{t+5}], v[{t}:{t+1}], s[56:57]")
                    a(f"v_pk_mul_f32 v[{t+6}:{t+7}], v[{t+2}:{t+3}], s[56:57]")
                    for i in range(4):
                        a(f"v_exp_f32 v{t+4+i}, v{t+4+i}")
                    a(f"v_pk_add_f32 v[{t+4}:{t+5}], v[{t+4}:{t+5}], 1.0")
                    a(f"v_pk_add_f32 v[{t+6}:{t+7}], v[{t+6}:{t+7}], 1.0")
                    for i in range(4):
                        a(f"v_rcp_f32 v{t+4+i}, v{t+4+i}")
                    a(f"v_pk_mul_f32 v[{t}:{t+1}], v[{t}:{t+1}], v[{t+4}:{t+5}]")
                    a(f"v_pk_mul_f32 v[{t+2}:{t+3}], v[{t+2}:{t+3}], v[{t+6}:{t+7}]")
                a(f"v_cvt_pk_bf16_f32 v{t+4}, v{t}, v{t+1}")
                a(f"v_cvt_pk_bf16_f32 v{t+5}, v{t+2}, v{t+3}")
                a(f"ds_write_b64 v10, v[{t+4}:{t+5}] offset:{mt*16*PIT + p*128}")
            a.lab(f"L_g1_skip{silu}_{mt}")
        if not silu:
            a("s_branch L_g1_st")
    a.lab("L_g1_st")
    a("s_waitcnt lgkmcnt(0)")
    a("s_barrier")
    a("v_lshlrev_b32 v10, 4, v1")
    a(f"s_mul_i32 s31, s30, {16*PIT}")
    a("v_add_u32 v11, s31, v10")
    a("s_lshl_b32 s31, s41, 7")
    a("s_lshl_b32 s32, s30, 4")
    a("s_add_u32 s31, s31, s32")
    a("s_mul_i32 s31, s31, s50")
    a("s_lshl_b32 s32, s47, 7")
    a("s_add_u32 s53, s31, s32")
    a("s_lshl_b32 s31, s52, 3")
    a("s_lshl_b64 s[54:55], 1, s31")
    a("s_sub_u32 s54, s54, 1")
    a("s_subb_u32 s55, s55, 0")
    a("s_mov_b64 exec, s[54:55]")
    for g in range(4):
        for i in range(4):
            a(f"ds_read_b128 v[{16+4*i}:{19+4*i}], v11 offset:{(4*g+i)*PIT}")
        for i in range(4):
            a(f"s_waitcnt lgkmcnt({3-i})")
            a(f"buffer_store_dwordx4 v[{16+4*i}:{19+4*i}], v10, s[{S_SRDC}:{S_SRDC+3}], s53 offen {STPOL}")
            a("s_add_u32 s53, s53, s50")
    a("s_mov_b64 exec, -1")
    a.lab("L_g1_fin")
    a("s_waitcnt vmcnt(0)")
    stamp(a, 3)
    stamp_flush(a, 4, 100)
    kstamp_end(a, 1)
    a.lab("L_g1_end")
    a("s_endpgm")
    return kernel_desc(name, cores[7].vgpr_end, 112, 96), 2 * ASLOT + 4 * 7 * 4096


WT_OFF, PK_OFF = 0, 2048


def load_wphi(a):
    a("v_mov_b32 v8, 0")
    a("v_mov_b32 v9, 0")
    a("v_lshlrev_b32 v2, 3, v0")
    a(f"ds_write_b64 v2, v[8:9] offset:{WT_OFF}")
    a("v_lshlrev_b32 v2, 2, v0")
    a("v_add_u32 v2, s22, v2")
    a("v_cmp_gt_u32 vcc, 162, v0")
    a("s_and_saveexec_b64 s[24:25], vcc")
    a("buffer_load_dword v3, v2, s[12:15], 0 offen")
    a("s_mov_b64 exec, s[24:25]")
    a("v_mul_u32_u24 v4, 57, v0")
    a("v_lshrrev_b32 v4, 9, v4")
    a("v_mul_u32_u24 v5, 9, v4")
    a("v_sub_u32 v5, v0, v5")
    a("v_lshlrev_b32 v5, 7, v5")
    a("v_lshl_add_u32 v4, v4, 1, v5")
    a("s_waitcnt lgkmcnt(0)")
    a("s_barrier")
    a("s_and_saveexec_b64 s[24:25], vcc")
    a("s_waitcnt vmcnt(0)")
    a(f"ds_write_b16 v4, v3 offset:{WT_OFF}")
    a(f"ds_write_b16_d16_hi v4, v3 offset:{WT_OFF+64}")
    a("s_mov_b64 exec, s[24:25]")
    a("s_waitcnt lgkmcnt(0)")
    a("s_barrier")


def project(a, sec_off):
    a("v_and_b32 v1, 63, v0")
    a("v_and_b32 v8, 15, v1")
    a("v_lshrrev_b32 v9, 4, v1")
    a("v_lshlrev_b32 v10, 6, v8")
    a("v_lshl_add_u32 v10, v9, 4, v10")
    a(f"ds_read_b128 v[12:15], v10 offset:{WT_OFF}")
    a(f"ds_read_b128 v[16:19], v10 offset:{WT_OFF+1024}")
    a("v_sub_u32 v11, v8, v1")
    a("s_movk_i32 s23, 3456")
    a("v_mul_lo_u32 v11, v11, s23")
    a("v_add_u32 v11, v11, v7")
    a("v_lshl_add_u32 v11, v9, 4, v11")
    for rt in range(4):
        a(f"s_mov_b32 s23, {rt*16*3456}")
        a(f"buffer_load_dwordx4 v[{100+4*rt}:{103+4*rt}], v11, s[8:11], s23 offen offset:{sec_off}")
    a("v_and_b32 v10, 0xc0, v0")
    a("v_add_u32 v10, v10, v8")
    a("v_mul_u32_u24 v10, 48, v10")
    a("v_lshl_add_u32 v10, v9, 3, v10")
    a("v_cmp_eq_u32 vcc, 0, v9")
    for rt in range(4):
        for i in range(8):
            a(f"v_mov_b32 v{40+i}, 0")
        a(f"s_waitcnt vmcnt({3-rt}) lgkmcnt(0)")
        a(f"v_mfma_f32_16x16x32_bf16 v[40:43], v[12:15], v[{100+4*rt}:{103+4*rt}], v[40:43]")
        a(f"v_mfma_f32_16x16x32_bf16 v[44:47], v[16:19], v[{100+4*rt}:{103+4*rt}], v[44:47]")
        a("s_nop 7")
        a("s_nop 1")
        a("v_cvt_pk_bf16_f32 v48, v40, v41")
        a("v_cvt_pk_bf16_f32 v49, v42, v43")
        a("v_cvt_pk_bf16_f32 v50, v44, v45")
        a(f"ds_write_b64 v10, v[48:49] offset:{PK_OFF + rt*16*48}")
        a("s_and_saveexec_b64 s[24:25], vcc")
        a(f"ds_write_b32 v10, v50 offset:{PK_OFF + rt*16*48 + 32}")
        a("s_mov_b64 exec, s[24:25]")
    a("v_mul_u32_u24 v10, 48, v0")
    a("s_waitcnt lgkmcnt(0)")
    a(f"ds_read_b128 v[20:23], v10 offset:{PK_OFF}")
    a(f"ds_read_b128 v[24:27], v10 offset:{PK_OFF+16}")
    a(f"ds_read_b32 v28, v10 offset:{PK_OFF+32}")
    a("s_waitcnt lgkmcnt(0)")


def feature_map(a, src, out):
    X, P = 40, 60
    for i in range(9):
        a(f"v_lshlrev_b32 v{P+2*i}, 16, v{src+i}")
        a(f"v_and_b32 v{P+2*i+1}, 0xffff0000, v{src+i}")
    a(f"v_max3_f32 v{X}, v{P}, v{P+1}, v{P+2}")
    a(f"v_min3_f32 v{X+1}, v{P}, v{P+1}, v{P+2}")
    for i in range(3, 17, 2):
        a(f"v_max3_f32 v{X}, v{X}, v{P+i}, v{P+i+1}")
        a(f"v_min3_f32 v{X+1}, v{X+1}, v{P+i}, v{P+i+1}")
    a(f"v_max_f32 v{X}, v{X}, v{P+17}")
    a(f"v_min_f32 v{X+1}, v{X+1}, v{P+17}")
    a("s_mov_b32 s26, 0x3fb8aa3b")
    a(f"v_mul_f32 v{X}, s26, v{X}")
    a(f"v_mul_f32 v{X+1}, s26, v{X+1}")
    E = 80
    for f in range(18):
        a(f"v_fma_f32 v{E+f}, v{P+f}, s26, -v{X}")
        a(f"v_fma_f32 v{E+18+f}, -v{P+f}, s26, v{X+1}")
    for f in range(36):
        a(f"v_exp_f32 v{E+f}, v{E+f}")
    for half in range(2):
        b = E + 18 * half
        a(f"v_add_f32 v{X+2+half}, v{b}, v{b+1}")
        for f in range(2, 18):
            a(f"v_add_f32 v{X+2+half}, v{X+2+half}, v{b+f}")
    a(f"v_rcp_f32 v{X+2}, v{X+2}")
    a(f"v_rcp_f32 v{X+3}, v{X+3}")
    a("s_nop 0")
    for half in range(2):
        b = E + 18 * half
        for f in range(18):
            a(f"v_mul_f32 v{b+f}, v{b+f}, v{X+2+half}")
    for i in range(18):
        a(f"v_cvt_pk_bf16_f32 v{out+i}, v{E+2*i}, v{E+2*i+1}")


def attn_common_head(a, endlab):
    a("s_load_dwordx2 s[4:5], s[0:1], 16")
    a("s_load_dwordx2 s[6:7], s[0:1], 72")
    a("s_cmp_ge_u32 s2, 256")
    a(f"s_cbranch_scc1 {endlab}")
    a("s_and_b32 s20, s2, 31")
    a("s_lshr_b32 s21, s2, 5")
    a("s_mul_i32 s22, s20, 648")
    a("s_waitcnt lgkmcnt(0)")
    srd(a, 8, "s6", "s7", S * 3 * D * 2)
    srd_add(a, 8, QKV_OFF)
    srd(a, 12, "s4", "s5", H * DH * DH * 2)
    a("s_lshl_b32 s23, s21, 8")
    a("v_add_u32 v7, s23, v0")
    a("s_movk_i32 s23, 3456")
    a("v_mul_lo_u32 v7, v7, s23")
    a("s_mul_i32 s23, s20, 36")
    a("v_add_u32 v7, s23, v7")


K2_PHI, K2_V = 14336, 38912
K2A_LDS = 55296


def gen_attn_kv(a):
    name = "attn_kv_kernel"
    kernel_head(a, name)
    attn_common_head(a, "L_kv_end")
    srd(a, 16, "s6", "s7", 256 * 1536 * 4)
    srd_add(a, 16, KVP_OFF)
    a("buffer_load_dwordx4 v[30:33], v7, s[8:11], 0 offen offset:2304")
    a("buffer_load_dwordx4 v[34:37], v7, s[8:11], 0 offen offset:2320")
    a("buffer_load_dword v38, v7, s[8:11], 0 offen offset:2336")
    load_wphi(a)
    project(a, 1152)
    feature_map(a, 20, 120)
    a("v_mul_u32_u24 v2, 96, v0")
    a(f"ds_write_b128 v2, v[120:123] offset:{K2_PHI}")
    a(f"ds_write_b128 v2, v[124:127] offset:{K2_PHI+16}")
    a(f"ds_write_b128 v2, v[128:131] offset:{K2_PHI+32}")
    a(f"ds_write_b128 v2, v[132:135] offset:{K2_PHI+48}")
    a(f"ds_write_b64 v2, v[136:137] offset:{K2_PHI+64}")
    a("v_lshlrev_b32 v2, 6, v0")
    a("v_mov_b32 v39, 0x3f80")
    a(f"ds_write_b128 v2, v[30:33] offset:{K2_V}")
    a(f"ds_write_b128 v2, v[34:37] offset:{K2_V+16}")
    a(f"ds_write_b64 v2, v[38:39] offset:{K2_V+32}")
    a("s_waitcnt lgkmcnt(0)")
    a("s_barrier")
    a("v_and_b32 v1, 63, v0")
    a("v_lshrrev_b32 v2, 6, v0")
    a("s_nop 0")
    a("v_readfirstlane_b32 s30, v2")
    a("v_lshrrev_b32 v3, 4, v1")
    a("v_bfe_u32 v4, v1, 2, 2")
    a("v_lshl_add_u32 v4, v3, 3, v4")
    a("v_and_b32 v5, 3, v1")
    a("v_lshlrev_b32 v5, 3, v5")
    a("s_and_b32 s31, s30, 1")
    a("s_lshl_b32 s32, s31, 5")
    a("v_lshl_add_u32 v6, v4, 6, v5")
    a(f"v_add_u32 v6, s32, v6")
    a("v_mul_u32_u24 v8, 96, v4")
    a("v_add_u32 v8, v8, v5")
    a("s_lshr_b32 s33, s30, 1")
    a("s_lshl_b32 s33, s33, 5")
    a("v_add_u32 v9, s33, v8")
    a("v_add_u32 v10, 64, v8")
    for t in range(2):
        for i in range(4):
            a(f"v_mov_b32 v{12+4*t+i}, 0")
    for ks in range(8):
        a(f"ds_read_b64_tr_b16 v[24:25], v6 offset:{K2_V + ks*2048}")
        a(f"ds_read_b64_tr_b16 v[26:27], v6 offset:{K2_V + ks*2048 + 256}")
        a(f"ds_read_b64_tr_b16 v[28:29], v9 offset:{K2_PHI + ks*3072}")
        a(f"ds_read_b64_tr_b16 v[30:31], v9 offset:{K2_PHI + ks*3072 + 384}")
        a(f"ds_read_b64_tr_b16 v[32:33], v10 offset:{K2_PHI + ks*3072}")
        a(f"ds_read_b64_tr_b16 v[34:35], v10 offset:{K2_PHI + ks*3072 + 384}")
        a("s_waitcnt lgkmcnt(0)")
        a("v_mfma_f32_16x16x32_bf16 v[12:15], v[24:27], v[28:31], v[12:15]")
        a("v_mfma_f32_16x16x32_bf16 v[16:19], v[24:27], v[32:35], v[16:19]")
        a("s_nop 1")
    a("s_nop 7")
    a("v_and_b32 v2, 15, v1")
    a("v_lshlrev_b32 v2, 7, v2")
    a("v_lshl_add_u32 v2, v3, 4, v2")
    a("s_lshl_b32 s34, s20, 3")
    a("s_add_u32 s34, s34, s21")
    a("s_mul_i32 s34, s34, 6144")
    a("s_lshl_b32 s35, s31, 6")
    a("s_add_u32 s34, s34, s35")
    a("s_lshl_b32 s35, s33, 6")
    a("s_add_u32 s35, s35, s34")
    a("buffer_store_dwordx4 v[12:15], v2, s[16:19], s35 offen")
    a("s_add_u32 s35, s34, 4096")
    a("buffer_store_dwordx4 v[16:19], v2, s[16:19], s35 offen")
    kstamp_end(a, 2)
    a.lab("L_kv_end")
    a("s_endpgm")
    return kernel_desc(name, 140, 0, 96), K2A_LDS


K2_KVT, K2_PHIQ = 14336, 18432
K2B_LDS = 51200


def gen_attn_o(a):
    name = "attn_o_kernel"
    kernel_head(a, name)
    attn_common_head(a, "L_o_end")
    srd(a, 16, "s6", "s7", 256 * 1536 * 4)
    srd_add(a, 16, KVP_OFF)
    a("v_mov_b32 v8, 0")
    a("v_mov_b32 v9, 0")
    a("v_mov_b32 v10, 0")
    a("v_mov_b32 v11, 0")
    a("v_lshlrev_b32 v2, 4, v0")
    a(f"ds_write_b128 v2, v[8:11] offset:{K2_KVT}")
    a("s_mul_i32 s34, s20, 49152")
    a("v_lshlrev_b32 v2, 2, v0")
    for i in range(6):
        for c in range(8):
            a(f"s_add_u32 s35, s34, {c*6144 + i*1024}")
            a(f"buffer_load_dword v{140+i*8+c}, v2, s[16:19], s35 offen")
    load_wphi(a)
    a("s_waitcnt vmcnt(0)")
    for i in range(6):
        r = 140 + i * 8
        for c in range(1, 8):
            a(f"v_add_f32 v{r}, v{r}, v{r+c}")
        a(f"v_cvt_pk_bf16_f32 v{r}, v{r}, v{r}")
        a(f"v_lshrrev_b32 v3, 5, v0")
        a(f"v_add_u32 v3, {8*i}, v3")
        a("v_and_b32 v4, 31, v0")
        a("v_lshlrev_b32 v5, 7, v4")
        a("v_lshl_add_u32 v5, v3, 1, v5")
        a("v_cmp_gt_u32 vcc, 36, v3")
        a("v_cmp_gt_u32 s[24:25], 18, v4")
        a("s_and_b64 s[24:25], s[24:25], vcc")
        a("s_and_saveexec_b64 s[26:27], s[24:25]")
        a(f"ds_write_b16 v5, v{r} offset:{K2_KVT}")
        a("s_mov_b64 exec, s[26:27]")
        a("v_cmp_eq_u32 s[24:25], 18, v4")
        a("s_and_b64 s[24:25], s[24:25], vcc")
        a("s_and_saveexec_b64 s[26:27], s[24:25]")
        for j in range(4):
            a(f"ds_write_b16 v5, v{r} offset:{K2_KVT + j*512}")
        a("s_mov_b64 exec, s[26:27]")
    project(a, 0)
    feature_map(a, 20, 120)
    a("v_lshlrev_b32 v2, 7, v0")
    a("v_mov_b32 v138, 0")
    a("v_mov_b32 v139, 0")
    a(f"ds_write_b128 v2, v[120:123] offset:{K2_PHIQ}")
    a(f"ds_write_b128 v2, v[124:127] offset:{K2_PHIQ+16}")
    a(f"ds_write_b128 v2, v[128:131] offset:{K2_PHIQ+32}")
    a(f"ds_write_b128 v2, v[132:135] offset:{K2_PHIQ+48}")
    a(f"ds_write_b128 v2, v[136:139] offset:{K2_PHIQ+64}")
    for i in range(4):
        a(f"v_mov_b32 v{8+i}, 0")
    a(f"ds_write_b128 v2, v[8:11] offset:{K2_PHIQ+80}")
    a(f"ds_write_b128 v2, v[8:11] offset:{K2_PHIQ+96}")
    a(f"ds_write_b128 v2, v[8:11] offset:{K2_PHIQ+112}")
    a("s_waitcnt lgkmcnt(0)")
    a("s_barrier")
    a("v_and_b32 v1, 63, v0")
    a("v_and_b32 v2, 15, v1")
    a("v_lshrrev_b32 v3, 4, v1")
    a("v_lshlrev_b32 v4, 7, v2")
    a("v_lshl_add_u32 v4, v3, 4, v4")
    for dt in range(2):
        for ks in range(2):
            a(f"ds_read_b128 v[{16+8*dt+4*ks}:{19+8*dt+4*ks}], v4 offset:{K2_KVT + dt*2048 + ks*64}")
    a("v_and_b32 v5, 0xc0, v0")
    a("v_lshl_add_u32 v5, v5, 7, v4")
    srd(a, 36, "s6", "s7", S * LD_HC)
    srd_add(a, 36, HC_OFF)
    a("s_lshl_b32 s23, s21, 8")
    a("v_and_b32 v6, 0xc0, v0")
    a("v_add_u32 v6, v6, v2")
    a("v_add_u32 v6, s23, v6")
    a(f"s_mov_b32 s23, {LD_HC}")
    a("v_mul_lo_u32 v6, v6, s23")
    a("s_mul_i32 s23, s20, 36")
    a("v_add_u32 v6, s23, v6")
    a("v_lshl_add_u32 v6, v3, 3, v6")
    a("v_cmp_eq_u32 vcc, 0, v3")
    for rt in range(4):
        a(f"ds_read_b128 v[32:35], v5 offset:{K2_PHIQ + rt*2048}")
        a(f"ds_read_b128 v[36:39], v5 offset:{K2_PHIQ + rt*2048 + 64}")
        for i in range(8):
            a(f"v_mov_b32 v{40+i}, 0")
        a("s_waitcnt lgkmcnt(0)")
        a("v_mfma_f32_16x16x32_bf16 v[40:43], v[16:19], v[32:35], v[40:43]")
        a("v_mfma_f32_16x16x32_bf16 v[44:47], v[24:27], v[32:35], v[44:47]")
        a("v_mfma_f32_16x16x32_bf16 v[40:43], v[20:23], v[36:39], v[40:43]")
        a("v_mfma_f32_16x16x32_bf16 v[44:47], v[28:31], v[36:39], v[44:47]")
        a("s_nop 7")
        a("s_nop 1")
        a("v_cvt_pk_bf16_f32 v48, v46, v46")
        a("v_lshlrev_b32 v48, 16, v48")
        a("v_add_f32 v48, 0x358637bd, v48")
        a("v_cvt_pk_bf16_f32 v48, v48, v48")
        a("v_lshlrev_b32 v48, 16, v48")
        a("v_rcp_f32 v49, v48")
        a("v_cvt_pk_bf16_f32 v50, v40, v41")
        a("v_cvt_pk_bf16_f32 v51, v42, v43")
        a("v_cvt_pk_bf16_f32 v52, v44, v45")
        for j, src in enumerate((50, 51, 52)):
            a(f"v_lshlrev_b32 v{40+2*j}, 16, v{src}")
            a(f"v_and_b32 v{41+2*j}, 0xffff0000, v{src}")
        for j in range(6):
            a(f"v_mul_f32 v53, v{40+j}, v49")
            a(f"v_fma_f32 v54, -v53, v48, v{40+j}")
            a(f"v_fma_f32 v{40+j}, v54, v49, v53")
        a("v_cvt_pk_bf16_f32 v50, v40, v41")
        a("v_cvt_pk_bf16_f32 v51, v42, v43")
        a("v_cvt_pk_bf16_f32 v52, v44, v45")
        a(f"s_mov_b32 s23, {rt*16*LD_HC}")
        a("buffer_store_dwordx2 v[50:51], v6, s[36:39], s23 offen")
        a("s_and_saveexec_b64 s[26:27], vcc")
        a("buffer_store_dword v52, v6, s[36:39], s23 offen offset:32")
        a("s_mov_b64 exec, s[26:27]")
    kstamp_end(a, 3)
    a.lab("L_o_end")
    a("s_endpgm")
    return kernel_desc(name, 192, 0, 96), K2B_LDS


K3_NST = 34
SLAB = 128 * 192 * 4


def gen_gemm2(a):
    name = "gemm2_kernel"
    kernel_head(a, name)
    a("s_load_dwordx2 s[34:35], s[0:1], 24")
    a("s_load_dwordx2 s[36:37], s[0:1], 48")
    a("s_load_dwordx2 s[38:39], s[0:1], 72")
    a("s_cmp_ge_u32 s2, 240")
    a("s_cbranch_scc1 L_g2_end")
    stamp(a, 0)
    a("s_and_b32 s40, s2, 7")
    a("s_lshr_b32 s41, s2, 3")
    a("s_mul_i32 s42, s41, 43")
    a("s_lshr_b32 s42, s42, 7")
    a("s_mul_i32 s43, s42, 3")
    a("s_sub_u32 s43, s41, s43")
    a("s_mul_i32 s40, s40, 10")
    a("s_add_u32 s40, s40, s42")
    a("s_lshr_b32 s42, s40, 4")
    a("s_and_b32 s40, s40, 15")
    a("s_waitcnt lgkmcnt(0)")
    srd(a, S_SRDA, "s38", "s39", S * LD_HC)
    srd_add(a, S_SRDA, HC_OFF)
    a(f"s_mov_b32 s{S_SRDB+3}, 0x00020000")
    a(f"s_mov_b32 s44, {D*D*2}")
    a(f"s_mov_b32 s45, {F*D*2}")
    a("s_movk_i32 s46, 1152")
    NB, NA = 4, 3
    gemm_lane_setup(a, NB, 3 * 4096, NA * ASLOT, 46, LD_HC)
    gemm_wave_setup(a, 3, 46)
    a("s_lshl_b32 s31, s40, 7")
    a("s_lshl_b32 s32, s30, 3")
    a("s_add_u32 s31, s31, s32")
    a(f"s_mul_i32 s{S_ABASE}, s31, {LD_HC}")
    a(f"s_mul_i32 s31, s42, {K3_NST*64}")
    a(f"s_add_u32 s{S_ABASE}, s{S_ABASE}, s31")
    a(f"s_mov_b32 s{S_APIECE}, {64*LD_HC}")
    a(f"s_mov_b32 s{S_LDB32}, 0")
    a(f"s_mul_i32 s47, s42, {K3_NST}")
    a("s_mul_i32 s48, s43, 384")
    for i in range(48):
        a(f"v_accvgpr_write_b32 a{i}, 0")

    def pre_step(aa, u):
        aa("s_sub_u32 s49, s47, 18")
        aa("s_cmp_lt_u32 s47, 18")
        aa("s_cselect_b32 s49, s47, s49")
        aa(f"s_cselect_b32 s{S_SRDB}, s34, s36")
        aa(f"s_cselect_b32 s{S_SRDB+1}, s35, s37")
        aa(f"s_cselect_b32 s{S_SRDB+2}, s44, s45")
        aa(f"s_mul_i32 s{S_BK}, s49, {32*1152}")
        aa(f"s_add_u32 s{S_BK}, s{S_BK}, s48")
        aa("s_add_u32 s47, s47, 1")
    c = Core(3, K3_NST, NA, NB, pre_step=pre_step)
    c.emit(a)
    stamp(a, 1)
    a("v_and_b32 v10, 15, v1")
    a("s_lshr_b32 s31, s30, 2")
    a("s_lshl_b32 s31, s31, 6")
    a("v_add_u32 v10, s31, v10")
    a("v_mul_u32_u24 v10, 768, v10")
    a("v_lshrrev_b32 v11, 4, v1")
    a("v_lshl_add_u32 v10, v11, 4, v10")
    a("s_and_b32 s31, s30, 3")
    a("s_lshl_b32 s31, s31, 6")
    a("v_add_u32 v10, s31, v10")
    a("s_mul_i32 s50, s40, 3")
    a("s_add_u32 s50, s50, s43")
    srd(a, S_SRDC, "s38", "s39", 240 * SLAB)
    srd_add(a, S_SRDC, PART_OFF)
    a("s_mul_i32 s51, s50, 5")
    a(f"s_mul_i32 s52, s51, {SLAB}")
    a(f"s_mul_i32 s53, s42, {SLAB}")
    a("s_add_u32 s53, s53, s52")
    a("s_nop 7")
    for mt in range(4):
        a(f"s_add_u32 s54, s53, {mt*12288}")
        for p in range(3):
            acc = (p * 4 + mt) * 4
            a(f"buffer_store_dwordx4 a[{acc}:{acc+3}], v10, s[{S_SRDC}:{S_SRDC+3}], s54 offen offset:{p*256}")
    a.lab("L_g2_fin")
    a("s_waitcnt vmcnt(0)")
    stamp(a, 3)
    stamp_flush(a, 4, 100)
    kstamp_end(a, 4)
    a.lab("L_g2_end")
    a("s_endpgm")
    return kernel_desc(name, max(c.vgpr_end, 188), 48, 96), NA * ASLOT + NB * 3 * 4096


def gen_combine(a):
    name = "combine_kernel"
    kernel_head(a, name)
    a("s_load_dwordx2 s[4:5], s[0:1], 0")
    a("s_load_dwordx2 s[6:7], s[0:1], 56")
    a("s_load_dwordx2 s[8:9], s[0:1], 72")
    a("s_cmp_ge_u32 s2, 256")
    a("s_cbranch_scc1 L_cb_end")
    a("v_mul_u32_u24 v2, 171, v0")
    a("v_lshrrev_b32 v2, 13, v2")
    a("v_mul_u32_u24 v3, 48, v2")
    a("v_sub_u32 v3, v0, v3")
    a("s_lshl_b32 s3, s2, 3")
    a("v_add_u32 v2, s3, v2")
    a("s_waitcnt lgkmcnt(0)")
    srd(a, 12, "s4", "s5", S * D * 2)
    srd(a, 16, "s6", "s7", S * D * 2)
    srd(a, 20, "s8", "s9", 240 * SLAB)
    srd_add(a, 20, PART_OFF)
    a("v_mul_u32_u24 v4, 1152, v2")
    a("v_lshl_add_u32 v4, v3, 3, v4")
    a("v_lshrrev_b32 v5, 7, v2")
    a(f"s_mov_b32 s3, {15*SLAB}")
    a("v_mul_lo_u32 v5, v5, s3")
    a("v_and_b32 v6, 127, v2")
    a("v_mul_u32_u24 v6, 768, v6")
    a("v_add_u32 v5, v5, v6")
    a("v_lshl_add_u32 v5, v3, 4, v5")
    for ng in range(3):
        for ks in range(5):
            a(f"s_mov_b32 s3, {(ng*5+ks)*SLAB}")
            r = 8 + (ng * 5 + ks) * 4
            a(f"buffer_load_dwordx4 v[{r}:{r+3}], v5, s[20:23], s3 offen")
        a(f"buffer_load_dwordx2 v[{68+2*ng}:{69+2*ng}], v4, s[12:15], 0 offen offset:{ng*384}")
    for ng in range(3):
        a(f"s_waitcnt vmcnt({(2-ng)*6 + ng})")
        r = 8 + ng * 20
        for ks in range(1, 5):
            for i in range(4):
                a(f"v_add_f32 v{r+i}, v{r+i}, v{r+4*ks+i}")
        xr = 68 + 2 * ng
        a(f"v_lshlrev_b32 v76, 16, v{xr}")
        a(f"v_and_b32 v77, 0xffff0000, v{xr}")
        a(f"v_lshlrev_b32 v78, 16, v{xr+1}")
        a(f"v_and_b32 v79, 0xffff0000, v{xr+1}")
        for i in range(4):
            a(f"v_add_f32 v{r+i}, v{r+i}, v{76+i}")
        a(f"v_cvt_pk_bf16_f32 v76, v{r}, v{r+1}")
        a(f"v_cvt_pk_bf16_f32 v77, v{r+2}, v{r+3}")
        a(f"buffer_store_dwordx2 v[76:77], v4, s[16:19], 0 offen offset:{ng*384}")
    kstamp_end(a, 5)
    a.lab("L_cb_end")
    a("s_endpgm")
    return kernel_desc(name, 80, 0, 96)


def main():
    a = A()
    descs = []
    launches = []
    descs.append(gen_ln(a))
    launches.append("; @launch kernel=ln_kernel grid=(512,1,1) block=(256,1,1) lds=0")
    d, lds = gen_gemm1(a)
    descs.append(d)
    launches.append(f"; @launch kernel=gemm1_kernel grid=(256,1,1) block=(512,1,1) lds={lds}")
    d, lds = gen_attn_kv(a)
    descs.append(d)
    launches.append(f"; @launch kernel=attn_kv_kernel grid=(256,1,1) block=(256,1,1) lds={lds}")
    d, lds = gen_attn_o(a)
    descs.append(d)
    launches.append(f"; @launch kernel=attn_o_kernel grid=(256,1,1) block=(256,1,1) lds={lds}")
    d, lds = gen_gemm2(a)
    descs.append(d)
    launches.append(f"; @launch kernel=gemm2_kernel grid=(240,1,1) block=(512,1,1) lds={lds}")
    descs.append(gen_combine(a))
    launches.append("; @launch kernel=combine_kernel grid=(256,1,1) block=(384,1,1) lds=0")
    hdr = open(f"cdna_kernels/{NAME}.s.ref").read().split("\n")
    hdr = [l for l in hdr if l.startswith(";") and not l.startswith("; @launch")]
    out = "\n".join(hdr) + "\n" + "\n".join(launches) + "\n"
    out += '.amdgcn_target "amdgcn-amd-amdhsa--gfx950"\n.text\n'
    out += "\n".join(a.L) + "\n"
    out += '.section .rodata,"a"\n.p2align 6\n' + "".join(descs)
    dst = sys.argv[1] if len(sys.argv) > 1 else f"cdna_kernels/{NAME}.s"
    open(dst, "w").write(out)
    print("wrote", dst, len(out), "bytes")


if __name__ == "__main__":
    main()
```
